```python
import torch

def _softmax(x, axis=-1):
    return torch.softmax(x, dim=axis)

def _gelu(x):
    return torch.nn.functional.gelu(x, approximate='tanh')

def _silu(x):
    return torch.nn.functional.silu(x)

def _sigmoid(x):
    return torch.sigmoid(x)

def _layernorm(x, axis=-1, eps=1e-05):
    m = x.mean(dim=axis, keepdim=True)
    v = x.var(dim=axis, keepdim=True, unbiased=False)
    return (x - m) / torch.sqrt(v + eps)

def _scatter_add(tgt, idx, src, axis=0):
    return tgt.clone().index_add_(axis, idx, src)

def _segment_sum(src, seg, n):
    out = torch.zeros((n,) + src.shape[1:], dtype=src.dtype)
    return out.index_add_(0, seg, src)

def _pad(x, pw):
    flat = tuple((v for pair in reversed(pw) for v in pair))
    return torch.nn.functional.pad(x, flat)
kernel_name = 'parallel_sum__spectral_fnet__mixer_gmlp__prompt'

def setup_inputs():

    _w = lambda a: (lambda t: t.to(torch.bfloat16) if t.is_floating_point() else t)(torch.as_tensor(a))

    def _A_setup():
        B, S, D = (1, 2048, 512)
        ns = torch.arange(S)[:, None] * torch.arange(S)[None, :]
        nd = torch.arange(D)[:, None] * torch.arange(D)[None, :]
        Ws_re = torch.cos(-2.0 * torch.pi * ns / S).to(float)
        Ws_im = torch.sin(-2.0 * torch.pi * ns / S).to(float)
        Wd_re = torch.cos(-2.0 * torch.pi * nd / D).to(float)
        Wd_im = torch.sin(-2.0 * torch.pi * nd / D).to(float)
        return {'x': _w((lambda *s: torch.randn(*s, dtype=torch.bfloat16) * 0.05)(B, S, D)), 'dft_seq_re': _w(Ws_re), 'dft_seq_im': _w(Ws_im), 'dft_hid_re': _w(Wd_re), 'dft_hid_im': _w(Wd_im)}
    _A_in = _A_setup()

    def _B_setup():
        B, S, D, F = (1, 2048, 512, 1792)
        Fh = F // 2
        return {'x': _w((lambda *s: torch.randn(*s, dtype=torch.bfloat16) * 0.05)(B, S, D)), 'w_in': _w((lambda *s: torch.randn(*s, dtype=torch.bfloat16) * 0.8)(D, 2 * Fh)), 'w_sp': _w(0.01 * (lambda *s: torch.randn(*s, dtype=torch.bfloat16) * 0.8)(S, S)), 'b_sp': _w(1.0 + 0.01 * (lambda *s: torch.randn(*s, dtype=torch.bfloat16) * 0.8)(S)), 'w_out': _w((lambda *s: torch.randn(*s, dtype=torch.bfloat16) * 0.8)(Fh, D))}
    _B_in = _B_setup()
    return {'A_x': _A_in['x'], 'A_dft_seq_re': _A_in['dft_seq_re'], 'A_dft_seq_im': _A_in['dft_seq_im'], 'A_dft_hid_re': _A_in['dft_hid_re'], 'A_dft_hid_im': _A_in['dft_hid_im'], 'B_x': _B_in['x'], 'B_w_in': _B_in['w_in'], 'B_w_sp': _B_in['w_sp'], 'B_b_sp': _B_in['b_sp'], 'B_w_out': _B_in['w_out']}

def reference(A_x, A_dft_seq_re, A_dft_seq_im, A_dft_hid_re, A_dft_hid_im, B_x, B_w_in, B_w_sp, B_b_sp, B_w_out):

    def _A_ref(x, dft_seq_re, dft_seq_im, dft_hid_re, dft_hid_im):
        a = torch.einsum('bsd,ed->bse', x, dft_hid_re)
        b = torch.einsum('bsd,ed->bse', x, dft_hid_im)
        y = torch.einsum('ts,bse->bte', dft_seq_re, a) - torch.einsum('ts,bse->bte', dft_seq_im, b)
        return y

    def _B_ref(x, w_in, w_sp, b_sp, w_out):
        B, S, D = x.shape
        F = w_in.shape[-1]
        Fh = F // 2
        z = _gelu(torch.einsum('bsd,df->bsf', x, w_in))
        z1 = z[..., :Fh].clone()
        z2 = _layernorm(z[..., Fh:], axis=-1)
        g = torch.einsum('ts,bsf->btf', w_sp, z2) + b_sp[None, :, None]
        return torch.einsum('bsf,fd->bsd', z1 * g, w_out)
    x = A_x
    xn = _layernorm(x, axis=-1)
    return x + _A_ref(xn, A_dft_seq_re, A_dft_seq_im, A_dft_hid_re, A_dft_hid_im) + _B_ref(xn, B_w_in, B_w_sp, B_b_sp, B_w_out)
```

```python
class Asm:
    def __init__(self):
        self.lines = []
        self._lbl = 0
    def __call__(self, s=""):
        for ln in s.split("\n"):
            self.lines.append("  " + ln.strip() if ln.strip() and not ln.strip().endswith(":") else ln.strip())
    def label(self, name):
        self.lines.append(name + ":")
    def newlabel(self, base="L"):
        self._lbl += 1
        return f".{base}_{self._lbl}"
    def c(self, s):
        self.lines.append("  ; " + s)
    def text(self):
        return "\n".join(self.lines) + "\n"

def vr(b, n=1):
    return f"v{b}" if n == 1 else f"v[{b}:{b+n-1}]"
def sr(b, n=1):
    return f"s{b}" if n == 1 else f"s[{b}:{b+n-1}]"
def ar(b, n=1):
    return f"a{b}" if n == 1 else f"a[{b}:{b+n-1}]"

def kernel_header(a, name):
    a.lines += [f".globl {name}", ".p2align 8", f".type {name},@function", f"{name}:"]

def descriptor(name, nvgpr=256, accum=256, nsgpr=102):
    return f""".p2align 6
.amdhsa_kernel {name}
  .amdhsa_next_free_vgpr {nvgpr}
  .amdhsa_next_free_sgpr {nsgpr}
  .amdhsa_accum_offset {accum}
  .amdhsa_group_segment_fixed_size 0
  .amdhsa_kernarg_size 104
  .amdhsa_user_sgpr_count 2
  .amdhsa_user_sgpr_kernarg_segment_ptr 1
  .amdhsa_system_sgpr_workgroup_id_x 1
.end_amdhsa_kernel
"""

def interleave(main, fill, per=1, start=0):
    out = []
    fi = 0
    n = 0
    for m in main:
        out.append(m)
        if m.startswith("v_mfma"):
            n += 1
            if n > start:
                for _ in range(per):
                    if fi < len(fill):
                        out.append(fill[fi]); fi += 1
    out += fill[fi:]
    return out
```

```python
import re
TRANS = ("v_exp_f32", "v_rcp_f32", "v_sqrt_f32", "v_rsq_f32", "v_log_f32", "v_sin_f32", "v_cos_f32")
def regs_of(op):
    op = op.strip().lstrip("-").strip("|")
    m = re.fullmatch(r"([vsa])(\d+)", op)
    if m: return {(m.group(1), int(m.group(2)))}
    m = re.fullmatch(r"([vsa])\[(\d+):(\d+)\]", op)
    if m: return {(m.group(1), i) for i in range(int(m.group(2)), int(m.group(3)) + 1)}
    if op == "vcc": return {("s", 106), ("s", 107)}
    if op == "vcc_lo": return {("s", 106)}
    if op == "vcc_hi": return {("s", 107)}
    if op == "m0": return {("s", 124)}
    if op == "exec": return {("s", 126), ("s", 127)}
    if op == "exec_lo": return {("s", 126)}
    if op == "exec_hi": return {("s", 127)}
    return set()
class I: pass
def parse(line):
    s = line.split(";")[0].strip()
    if not s or s.endswith(":") or s.startswith("."): return None
    parts = s.split(None, 1)
    mn = parts[0]
    ops = []
    if len(parts) > 1:
        raw = parts[1]
        toks = [t.strip() for t in raw.split(",")]
        for t in toks:
            ops.append(t.split()[0] if t else t)
        mods = raw
    else:
        mods = ""
    i = I(); i.mn = mn; i.text = s; i.w = set(); i.r = set(); i.kind = "other"; i.states = 1; i.passes = 0
    i.srcc = set(); i.ab = set(); i.data = set(); i.mods = mods
    if mn == "s_nop":
        i.states = int(ops[0], 0) + 1; i.kind = "nop"
    elif mn.startswith("v_mfma"):
        i.kind = "mfma"; i.passes = 8 if "32x32" in mn else 4
        i.w = regs_of(ops[0]); i.ab = regs_of(ops[1]) | regs_of(ops[2]); i.srcc = regs_of(ops[3]); i.r = i.ab | i.srcc
        i.dst = ops[0]; i.c = ops[3]
    elif mn.startswith("v_"):
        i.kind = "valu"
        if mn.startswith("v_permlane") and "swap" in mn:
            i.w = regs_of(ops[0]) | regs_of(ops[1]); i.r = set(i.w)
        else:
            i.w = regs_of(ops[0])
            for o in ops[1:]: i.r |= regs_of(o)
            if "fmac" in mn or "dot2c" in mn or "mac" in mn: i.r |= i.w
            if mn.startswith("v_cndmask") and len(ops) == 3: i.r |= regs_of("vcc")
            if mn.startswith("v_cmp") and mn.endswith("_e32"): pass
        i.trans = mn.replace("_e32", "").replace("_e64", "") in TRANS
        i.dpp = "dpp" in mn or "row_" in mods or "quad_perm" in mods
    elif mn.startswith("ds_"):
        i.kind = "ds"
        if mn.startswith("ds_read"):
            i.w = regs_of(ops[0])
            for o in ops[1:]: i.r |= regs_of(o)
        else:
            for o in ops: i.r |= regs_of(o)
    elif mn.startswith("buffer_") or mn.startswith("global_"):
        i.kind = "vmem"
        lds = re.search(r"\blds\b", mods) is not None
        i.lds = lds
        if "load" in mn and not lds:
            i.w = regs_of(ops[0])
            for o in ops[1:]: i.r |= regs_of(o)
        else:
            for o in ops: i.r |= regs_of(o)
            if "store" in mn and ("x4" in mn or "x3" in mn): i.data = regs_of(ops[0])
        if lds: i.r |= regs_of("m0")
    elif mn.startswith("s_"):
        i.kind = "salu"
        if mn.startswith(("s_waitcnt", "s_barrier", "s_branch", "s_cbranch", "s_endpgm", "s_setprio", "s_sleep", "s_cmp")):
            for o in ops: i.r |= regs_of(o)
        else:
            if ops: i.w = regs_of(ops[0])
            for o in ops[1:]: i.r |= regs_of(o)
    return i
def need(p, c):
    n = 0
    V = lambda s: {x for x in s if x[0] in "va"}
    S = lambda s: {x for x in s if x[0] == "s"}
    if p.kind == "mfma":
        d12 = 12 if p.passes == 8 else 8
        if c.kind == "valu" and (p.w & (c.r | c.w)): n = max(n, d12)
        if c.kind in ("ds", "vmem") and (p.w & (c.r | c.w)): n = max(n, d12)
        if c.kind == "mfma":
            if p.w & c.ab: n = max(n, d12)
            if p.w & c.srcc:
                if not (c.c == p.dst and c.passes == p.passes): n = max(n, 10 if p.passes == 8 else 6)
                elif "4x4" in p.mn: n = max(n, 2)
            elif p.w & c.w: n = max(n, 10 if p.passes == 8 else 6)
        if c.kind == "valu" and (p.srcc & c.w): n = max(n, 7 if p.passes == 8 else 3)
    if p.kind == "valu":
        if c.kind == "mfma" and (V(p.w) & c.r): n = max(n, 2)
        if c.kind == "mfma" and (p.w & regs_of("exec")): n = max(n, 4)
        if c.kind == "valu":
            if p.trans and not c.trans and (p.w & c.r): n = max(n, 1)
            if (c.mn.startswith("v_permlane") or c.dpp) and (V(p.w) & c.r): n = max(n, 2)
            if c.mn.startswith(("v_readfirstlane", "v_readlane")) and (V(p.w) & c.r): n = max(n, 1)
            if S(p.w) & c.r: n = max(n, 2)
        if c.kind == "vmem" and (S(p.w) & c.r): n = max(n, 5)
    if p.kind == "vmem" and p.data:
        if c.kind == "valu" and (p.data & c.w): n = max(n, 2)
        elif p.data & c.w: n = max(n, 1)
    if p.kind == "salu" and (p.w & regs_of("m0")) and c.kind == "vmem" and getattr(c, "lds", False): n = max(n, 1)
    return n
def fix(lines):
    out = []; hist = []
    pos = 0; added = 0
    for ln in lines:
        c = parse(ln)
        if c is None:
            out.append(ln); continue
        req = 0
        for p, pp in hist:
            gap = pos - pp - p.states + 0
            n = need(p, c)
            if n > gap: req = max(req, n - gap)
        while req > 0:
            k = min(req, 8)
            out.append(f"  s_nop {k-1}")
            pos += k; req -= k; added += k
        out.append(ln)
        hist.append((c, pos)); pos += c.states
        hist = [(p, pp) for p, pp in hist if pos - pp <= 24]
    return out, added
```

```python
from asmlib import *
import hazfix

WS_XT = 0
WS_ST = 0x1400000
WS_USED = 0x1500000
RING = 18
MISC = RING * 8192
CT0 = MISC
RT0 = MISC + 2048
STG = {0: 4 * 8192, 1: 6 * 8192, 2: 8 * 8192}
C0 = 0xc0135761
C1 = 0xbdd2d3e8
import struct
def f2u(x): return struct.unpack("<I", struct.pack("<f", x))[0]
C0 = f2u(-2.0 * 0.7978845608028654 * 1.4426950408889634)
C1 = f2u(-2.0 * 0.7978845608028654 * 1.4426950408889634 * 0.044715)
EPS = f2u(1e-5)

def pos(n): return n % RING
def wunit(t): return 3 * t + 2 if t < 8 else 16 + t

class LG:
    def __init__(self, out): self.out = out; self.q = []
    def op(self, s, tag=None): self.out.append(s); self.q.append(tag)
    def wait(self, tag):
        idx = [i for i, t in enumerate(self.q) if t == tag]
        if not idx: return
        n = len(self.q) - 1 - idx[-1]
        self.out.append(f"s_waitcnt lgkmcnt({min(n, 15)})")
        self.q = self.q[len(self.q) - min(n, 15):] if min(n, 15) > 0 else []
    def waitall(self):
        if self.q: self.out.append("s_waitcnt lgkmcnt(0)")
        self.q = []

class AddrReg:
    def __init__(self, reg, base=0): self.reg = reg; self.base = base
    def off(self, out, target):
        o = target - self.base
        if o < 0 or o > 65535:
            nb = (target // 8192) * 8192
            d = nb - self.base
            out.append(f"v_add_u32 v{self.reg}, {d & 0xffffffff}, v{self.reg}")
            self.base = nb; o = target - nb
        return o

def gen_k1(opt, VM, Stamps):
    a = Asm()
    name = "k1_kernel"
    kernel_header(a, name)
    Lexit = ".Lk1_exit"
    z1gelu = opt.get("k1_z1gelu", 1)
    sp = Stamps(a, opt.get("stamp"))
    a(f"""
    s_cmp_ge_u32 s2, 256
    s_cbranch_scc1 {Lexit}
    s_load_dwordx2 s[24:25], s[0:1], 0
    s_load_dwordx2 s[28:29], s[0:1], 48
    s_load_dwordx4 s[8:11], s[0:1], 24
    s_load_dwordx4 s[16:19], s[0:1], 88
    """)
    sp.mark()
    a(f"""
    v_lshrrev_b32 v1, 6, v0
    s_and_b32 s14, s2, 7
    s_lshr_b32 s15, s2, 3
    v_readfirstlane_b32 s22, v1
    v_and_b32 v0, 63, v0
    s_lshr_b32 s20, s14, 1
    s_lshl_b32 s20, s20, 2
    s_lshr_b32 s3, s15, 3
    s_add_u32 s20, s20, s3          ; rb
    s_and_b32 s21, s14, 1
    s_lshl_b32 s21, s21, 3
    s_and_b32 s3, s15, 7
    s_add_u32 s21, s21, s3          ; j
    s_mov_b32 s26, {2048*1024}
    s_mov_b32 s27, 0x20000
    s_mov_b32 s30, {512*3584}
    s_mov_b32 s31, 0x20000
    s_mov_b32 s34, {512*1024}
    s_mov_b32 s35, 0x20000
    s_mov_b32 s38, {WS_USED}
    s_mov_b32 s39, 0x20000
    s_mov_b32 s42, 256
    s_mov_b32 s43, 0x20000
    s_lshl_b32 s44, s20, 2
    s_cmp_lt_u32 s22, 4
    s_cbranch_scc1 .Lk1_compute
    """)
    L = []
    class A2:
        def __call__(self, s):
            for ln in s.split("\n"):
                if ln.strip(): L.append(ln.strip())
    e = A2()
    vm = VM(e)
    lg = LG(L)
    VX, VW = 4, 6
    CTR = 8
    CDR = 11
    ONES = 20
    CF = 24
    CACC = 40
    e(f"""
    s_sub_u32 s22, s22, 4
    v_lshrrev_b32 v1, 3, v0
    v_and_b32 v2, 7, v0
    v_lshrrev_b32 v3, 4, v0
    s_lshl_b32 s3, s22, 4
    v_add_u32 v1, s3, v1            ; 16e + (l>>3)
    v_xor_b32 v3, v2, v3
    v_lshlrev_b32 v3, 4, v3
    v_lshl_add_u32 v{VX}, v1, 10, v3
    v_xor_b32 v{VX+1}, 64, v{VX}
    v_add_u32 v{VX+1}, {8*1024-1024}, v{VX+1}
    v_bfe_u32 v3, v0, 4, 1
    v_lshlrev_b32 v3, 2, v3
    v_xor_b32 v2, v2, v3
    v_lshlrev_b32 v2, 4, v2
    v_mul_u32_u24 v1, 3584, v1
    v_add_u32 v{VW}, v1, v2
    v_add_u32 v{VW+1}, {8*3584-1024}, v{VW}
    s_lshl_b32 s46, s20, 17         ; x base
    s_and_b32 s47, s21, 7
    s_lshl_b32 s47, s47, 16
    s_mul_i32 s49, s21, 112
    s_add_u32 s48, s49, 1792
    s_lshl_b32 s50, s22, 11         ; e*2048
    s_cmp_lt_u32 s21, 8
    s_waitcnt lgkmcnt(0)
    s_cselect_b32 s32, s8, s10
    s_cselect_b32 s33, s9, s11
    s_mov_b32 s36, s18
    s_mov_b32 s37, s19
    s_mov_b32 s40, s16
    s_mov_b32 s41, s17
    """)
    def step_of(n): return n // 3 if n < 24 else n - 16
    def dma(n):
        e(f"s_add_u32 m0, s50, {pos(n)*8192}")
        masked = False
        if n < 24:
            t, u = divmod(n, 3)
            if u < 2:
                srd, base, off, v = "s[24:27]", "s46", u*65536 + t*128, VX
            else:
                srd, base, off, v = "s[28:31]", "s48", t*64*3584, VW; masked = True
        elif n < 32:
            srd, base, off, v = "s[28:31]", "s49", (n-24)*64*3584, VW
        else:
            srd, base, off, v = "s[32:35]", "s47", (n-32)*128, VX
        e(f"s_add_u32 s3, {base}, {off}")
        if masked: e("s_mov_b64 exec, s[52:53]")
        vm.issue(f"buffer_load_dwordx4 v{v}, {srd}, s3 offen lds", step_of(n))
        vm.issue(f"buffer_load_dwordx4 v{v+1}, {srd}, s3 offen offset:1024 lds", step_of(n))
        if masked: e("s_mov_b64 exec, -1")
    e("s_mov_b32 s52, 0xF7F77F7F")
    e("s_mov_b32 s53, 0xF7F77F7F")
    for n in range(18): dma(n)
    e(f"""
    s_or_b32 s3, s21, s22
    s_cmp_lg_u32 s3, 0
    s_cbranch_scc1 .Lk1_nononce
    s_memrealtime s[54:55]
    s_waitcnt lgkmcnt(0)
    s_or_b32 s54, s54, 1
    v_mov_b32 v1, s54
    """)
    vm.issue("buffer_store_dword v1, off, s[40:43], s44 sc1", "nst")
    L.append(".Lk1_nononce:")
    vm.ops.pop()
    e(f"""
    v_lshrrev_b32 v1, 4, v0         ; G
    v_bfe_u32 v2, v0, 2, 2          ; r
    v_lshl_add_u32 v1, v1, 3, v2
    v_lshlrev_b32 v1, 7, v1
    v_bfe_u32 v2, v0, 3, 1
    v_lshlrev_b32 v2, 6, v2
    s_lshl_b32 s3, s22, 5
    v_xor_b32 v2, s3, v2
    v_add_u32 v1, v1, v2
    v_and_b32 v2, 3, v0
    v_lshl_add_u32 v{CTR}, v2, 3, v1
    v_add_u32 v{CTR+1}, 0x10000, v{CTR}
    v_add_u32 v{CTR+2}, 0x20000, v{CTR}
    v_and_b32 v1, 15, v0
    s_lshl_b32 s3, s22, 4
    v_add_u32 v2, s3, v1
    v_lshlrev_b32 v2, 7, v2
    v_lshrrev_b32 v1, 1, v1
    v_lshrrev_b32 v3, 4, v0
    v_xor_b32 v1, v1, v3
    v_lshl_add_u32 v{CDR}, v1, 4, v2
    v_xor_b32 v{CDR+1}, 64, v{CDR}
    v_add_u32 v{CDR+2}, 0x10000, v{CDR}
    v_add_u32 v{CDR+3}, 0x10000, v{CDR+1}
    v_add_u32 v{CDR+4}, 0x20000, v{CDR}
    v_add_u32 v{CDR+5}, 0x20000, v{CDR+1}
    v_mov_b32 v{ONES}, 0x3f803f80
    v_mov_b32 v{ONES+1}, 0x3f803f80
    v_mov_b32 v{ONES+2}, 0x3f803f80
    v_mov_b32 v{ONES+3}, 0x3f803f80
    v_and_b32 v1, 15, v0
    s_lshl_b32 s3, s22, 7
    s_add_u32 s3, s3, {CT0}
    v_lshl_add_u32 v17, v1, 3, s3
    """)
    cs_first = [True]
    def colsum(ts):
        for gi in range(0, len(ts), 2):
            grp = ts[gi:gi+2]
            for s_, t in enumerate(grp):
                p = pos(wunit(t)) * 8192
                win, o = divmod(p, 65536)
                f = CF + s_*8
                if t < 16:
                    for kk in range(2):
                        lg.op(f"ds_read_b64_tr_b16 {vr(f+kk*4,2)}, v{CTR+win} offset:{o+kk*4096}", ("cs", t))
                        lg.op(f"ds_read_b64_tr_b16 {vr(f+kk*4+2,2)}, v{CTR+win} offset:{o+kk*4096+512}", ("cs", t))
                else:
                    for kk in range(2):
                        lg.op(f"ds_read_b128 {vr(f+kk*4,4)}, v{CDR+2*win+kk} offset:{o}", ("cs", t))
            for s_, t in enumerate(grp):
                f = CF + s_*8
                lg.wait(("cs", t))
                for kk in range(2):
                    src = "0" if (t % 8 == 0 and kk == 0) else vr(CACC, 4)
                    e(f"v_mfma_f32_16x16x32_bf16 {vr(CACC,4)}, {vr(ONES,4)}, {vr(f+kk*4,4)}, {src}")
    def ct_write(ph):
        e(f"""
        v_cvt_pk_bf16_f32 v1, v{CACC}, v{CACC}
        v_lshlrev_b32 v1, 16, v1
        v_sub_f32 v2, v{CACC}, v1
        v_cvt_pk_bf16_f32 v18, v{CACC}, v2
        v_and_b32 v1, 0xffff0000, v18
        v_sub_f32 v2, v2, v1
        v_cvt_pk_bf16_f32 v19, v2, 0
        """)
        lg.op(f"ds_write_b64 v17, v[18:19] offset:{ph*512}", "ct")
        lg.wait("ct")
    nxt = 18
    for t in range(10):
        vm.wait(t)
        e("s_barrier")
        if t >= 2:
            k = 3 if t < 9 else 1
            for _ in range(k):
                dma(nxt); nxt += 1
            if t == 9:
                vm.issue("buffer_load_dword v44, off, s[40:43], s44 sc1", "nonce")
        colsum([t])
        if t == 7: ct_write(0)
    assert nxt == 40
    vm.wait(11)
    e("s_barrier")
    colsum([10, 11])
    vm.wait(15)
    e("s_barrier")
    colsum([12, 13, 14, 15])
    ct_write(1)
    vm.wait(23)
    e("s_barrier")
    colsum(list(range(16, 24)))
    ct_write(2)
    SRr, SR3, GA, GA3, PA, RW, RR = 4, 5, 6, 7, 8, 9, 10
    ZP = 48
    ZF = 64
    PL = 96
    RC = 128
    e(f"""
    v_lshrrev_b32 v1, 4, v0
    v_bfe_u32 v2, v0, 2, 2
    v_and_b32 v3, 1, v1
    v_xor_b32 v2, v2, v3
    v_lshlrev_b32 v2, 6, v2
    v_lshl_add_u32 v2, v1, 8, v2
    v_and_b32 v3, 3, v0
    v_lshl_add_u32 v2, v3, 4, v2
    s_lshl_b32 s3, s22, 12
    s_add_u32 s3, s3, {STG[0]}
    v_add_u32 v{SRr}, s3, v2
    v_lshrrev_b32 v1, 5, v0
    v_lshlrev_b32 v2, 9, v1
    v_sub_u32 v{SR3}, v{SRr}, v2
    v_lshrrev_b32 v2, 2, v0
    v_lshlrev_b32 v2, 12, v2
    v_lshl_add_u32 v{GA}, v3, 4, v2
    v_lshlrev_b32 v2, 15, v1
    v_sub_u32 v{GA3}, v{GA}, v2
    v_lshlrev_b32 v{PA}, 4, v0
    s_lshl_b32 s3, s22, 8
    s_add_u32 s3, s3, {RT0}
    v_and_b32 v1, 31, v0
    v_lshl_add_u32 v{RW}, v1, 3, s3
    v_lshl_add_u32 v{RR}, v3, 6, s3
    s_lshl_b32 s56, s20, 2
    s_add_u32 s56, s56, s22
    s_lshl_b32 s56, s56, 13
    s_add_u32 s56, s56, {WS_ST}
    ; z2n store base: (1024+56j)*4096 + (rb*128+32e)*2
    s_mul_i32 s57, s21, {56*4096}
    s_add_u32 s57, s57, {1024*4096}
    s_lshl_b32 s3, s20, 8
    s_add_u32 s57, s57, s3
    s_lshl_b32 s3, s22, 6
    s_add_u32 s57, s57, s3
    s_mov_b32 s58, 4000
    .Lk1_lnonce:
    s_waitcnt vmcnt(0)
    v_readfirstlane_b32 s45, v44
    s_cmp_lg_u32 s45, 0
    s_cbranch_scc1 .Lk1_lnonce_ok
    s_sub_u32 s58, s58, 1
    s_cmp_eq_u32 s58, 0
    s_cbranch_scc1 .Lk1_lnonce_ok
    buffer_load_dword v44, off, s[40:43], s44 sc1
    s_branch .Lk1_lnonce
    .Lk1_lnonce_ok:
    s_add_u32 s59, s56, 4096
    s_barrier
    """)
    def polls():
        for q in range(8):
            e(f"buffer_load_dwordx4 {vr(PL+4*q,4)}, v{PA}, s[36:39], {'s56' if q < 4 else 's59'} offen offset:{(q&3)*1024} sc1")
    polls()
    for i in range(4):
        lg.op(f"ds_read_b128 {vr(ZP+4*i,4)}, v{SR3 if i == 3 else SRr} offset:{i*1024}", ("z", i))
    for i in range(4):
        lg.wait(("z", i))
        for k in range(4):
            e(f"v_lshlrev_b32 v{ZF+8*i+2*k}, 16, v{ZP+4*i+k}")
            e(f"v_and_b32 v{ZF+8*i+2*k+1}, 0xffff0000, v{ZP+4*i+k}")
    e("s_mov_b32 s58, 4000")
    L.append(".Lk1_poll:")
    for q in range(8):
        e(f"s_waitcnt vmcnt({7-q})")
        b = PL + 4*q
        if q == 0:
            e(f"v_min_u32 v1, v{b+1}, v{b+3}")
            e(f"v_max_u32 v2, v{b+1}, v{b+3}")
            e(f"v_mov_b32 v12, v{b}")
            e(f"v_mov_b32 v13, v{b+2}")
        else:
            e(f"v_min3_u32 v1, v1, v{b+1}, v{b+3}")
            e(f"v_max3_u32 v2, v2, v{b+1}, v{b+3}")
            e(f"v_add_f32 v12, v12, v{b}")
            e(f"v_add_f32 v13, v13, v{b+2}")
    e(f"""
    v_cmp_ne_u32 vcc, s45, v1
    v_cmp_ne_u32 s[60:61], s45, v2
    s_or_b64 vcc, vcc, s[60:61]
    s_cbranch_scc0 .Lk1_poll_ok
    s_sub_u32 s58, s58, 1
    s_cmp_eq_u32 s58, 0
    s_cbranch_scc1 .Lk1_poll_ok
    """)
    polls()
    e(f"""
    s_branch .Lk1_poll
    .Lk1_poll_ok:
    v_mov_b32 v14, v12
    v_mov_b32 v15, v13
    s_nop 1
    v_permlane32_swap_b32 v12, v14
    v_permlane32_swap_b32 v13, v15
    s_nop 1
    v_add_f32 v12, v12, v14
    v_add_f32 v13, v13, v15
    v_mul_f32 v12, {f2u(1.0/896)}, v12
    v_mul_f32 v13, {f2u(1.0/896)}, v13
    v_fma_f32 v13, -v12, v12, v13
    v_cvt_pk_bf16_f32 v12, v12, v13
    v_and_b32 v13, 0xffff0000, v12
    v_add_f32 v13, {EPS}, v13
    v_cvt_pk_bf16_f32 v13, v13, v13
    v_lshlrev_b32 v13, 16, v13
    v_sqrt_f32 v13, v13
    v_lshlrev_b32 v12, 16, v12
    v_cvt_pk_bf16_f32 v13, v13, v13
    v_lshlrev_b32 v13, 16, v13
    v_rcp_f32 v14, v13
    v_mul_f32 v15, -v12, v14
    """)
    lg.op(f"ds_write_b64 v{RW}, v[14:15]", "rw")
    lg.wait("rw")
    for k in range(4):
        lg.op(f"ds_read_b128 {vr(RC+4*k,4)}, v{RR} offset:{k*16}", ("rc", k))
    for k in range(4):
        lg.wait(("rc", k))
        for i in range(4):
            for d in range(2):
                z = ZF + 8*i + 2*k + d
                e(f"v_fma_f32 v{z}, v{z}, v{RC+4*k+2*d}, v{RC+4*k+2*d+1}")
            e(f"v_cvt_pk_bf16_f32 v{ZP+4*i+k}, v{ZF+8*i+2*k}, v{ZF+8*i+2*k+1}")
    for i in range(4):
        e(f"s_add_u32 s3, s57, {i*16*4096}")
        e(f"buffer_store_dwordx4 {vr(ZP+4*i,4)}, v{GA3 if i == 3 else GA}, s[36:39], s3 offen")
    fixed, nadd = hazfix.fix(L)
    for x in fixed: a(x)
    if opt.get("stamp") == 2:
        a("s_waitcnt vmcnt(0)")
        sp.dump(Lexit, "s22")
    a("s_endpgm")

    a.label(".Lk1_compute")
    O = []
    lg = LG(O)
    def c(s):
        for ln in s.split("\n"):
            if ln.strip(): O.append(ln.strip())
    AX, AW, SWE, SWO, SR, GA, CTA = 4, 8, 10, 11, 12, 13, 14
    SD, K0, K1, R, PA = 15, 16, 17, 18, 19
    NM = 20
    S_, TAG, Q_ = 24, 25, 26
    TMP = [[28, 29, 30, 31], [1, 2, 3, 27]]
    FIFO = 32; NF = 8
    ACC = [96, 64]
    SQ = 80
    XF = 128
    c(f"""
    v_and_b32 v1, 31, v0            ; row
    v_lshrrev_b32 v2, 5, v0         ; h
    v_bfe_u32 v3, v0, 1, 3
    v_xor_b32 v3, v3, v2
    v_lshlrev_b32 v3, 4, v3
    v_lshl_add_u32 v3, v1, 7, v3
    s_lshl_b32 s3, s22, 12          ; w*4096 : (w>>1)*8192 + (w&1)*4096
    v_add_u32 v{AX}, s3, v3
    v_xor_b32 v{AX+1}, 32, v{AX}
    v_xor_b32 v{AX+2}, 64, v{AX}
    v_xor_b32 v{AX+3}, 96, v{AX}
    v_bfe_u32 v3, v0, 1, 1
    v_lshlrev_b32 v3, 6, v3
    v_xor_b32 v3, 0x70, v3
    v_lshl_add_u32 v3, v0, 7, v3
    v_add_u32 v27, 0x10000, v3
    v_add_u32 v26, 0x20000, v3
    v_mov_b32 v28, 0x3f803f80
    v_mov_b32 v29, 0x3f803f80
    v_mov_b32 v30, 0x3f803f80
    v_mov_b32 v31, 0x3f803f80
    """)
    for p in (2, 5, 8, 11, 14, 17):
        win, o = divmod(p * 8192, 65536)
        lg.op(f"ds_write_b128 v{[3, 27, 26][win]}, v[28:31] offset:{o}", "ones")
    c(f"""
    v_bfe_u32 v3, v0, 2, 2
    v_lshl_add_u32 v3, v2, 3, v3
    v_lshlrev_b32 v3, 7, v3
    v_bfe_u32 v{AW}, v0, 4, 1
    v_bfe_u32 v{AW+1}, v0, 3, 1
    v_lshl_add_u32 v{AW}, v{AW+1}, 1, v{AW}
    v_lshl_add_u32 v3, v{AW}, 5, v3
    v_and_b32 v{AW+1}, 3, v0
    v_lshl_add_u32 v{AW}, v{AW+1}, 3, v3
    v_xor_b32 v{AW+1}, 64, v{AW}
    ; stage write bases (+ w*4096 + STG0)
    s_add_u32 s3, s3, {STG[0]}
    v_lshl_add_u32 v3, v1, 1, s3
    v_mul_u32_u24 v{SWE}, 320, v2
    v_mul_u32_u24 v{SWO}, 192, v2
    v_add_u32 v{SWE}, v{SWE}, v3
    v_add_u32 v{SWO}, v{SWO}, v3
    ; stage read addr
    v_lshrrev_b32 v3, 4, v0
    v_bfe_u32 v{SR}, v0, 2, 2
    v_and_b32 v{GA}, 1, v3
    v_xor_b32 v{SR}, v{SR}, v{GA}
    v_lshlrev_b32 v{SR}, 6, v{SR}
    v_lshl_add_u32 v{SR}, v3, 8, v{SR}
    v_and_b32 v3, 3, v0
    v_lshl_add_u32 v{SR}, v3, 4, v{SR}
    v_add_u32 v{SR}, s3, v{SR}
    v_lshrrev_b32 v{GA}, 2, v0
    v_lshlrev_b32 v{GA}, 12, v{GA}
    v_lshl_add_u32 v{GA}, v3, 4, v{GA}
    v_mov_b32 v{CTA}, {CT0}
    v_lshl_add_u32 v{CTA}, v1, 3, v{CTA}
    v_lshlrev_b32 v{PA}, 3, v2
    v_lshl_add_u32 v{PA}, v1, 4, v{PA}
    v_mov_b32 v{NM+2}, 0
    v_mov_b32 v{NM+3}, 0
    v_mov_b32 v{S_}, 0
    v_mov_b32 v{Q_}, 0
    s_mov_b32 s60, 0xAAAAAAAA
    s_mov_b32 s61, 0xAAAAAAAA
    s_mov_b32 s62, 0xCCCCCCCC
    s_mov_b32 s63, 0xCCCCCCCC
    s_mov_b32 s80, 0xF0F0F0F0
    s_mov_b32 s81, 0xF0F0F0F0
    s_mov_b32 s82, 0xFF00FF00
    s_mov_b32 s83, 0xFF00FF00
    s_mov_b32 s84, 0xFFFF0000
    s_mov_b32 s85, 0xFFFF0000
    s_mov_b32 s86, -1
    s_mov_b32 s87, 0
    s_lshl_b32 s56, s20, 2
    s_add_u32 s56, s56, s22
    s_lshl_b32 s56, s56, 4
    s_add_u32 s56, s56, s21
    s_lshl_b32 s56, s56, 9
    s_add_u32 s56, s56, {WS_ST}
    ; store bases
    s_lshl_b32 s57, s20, 8
    s_lshl_b32 s3, s22, 6
    s_add_u32 s57, s57, s3          ; (rb*128+32w)*2
    s_mul_i32 s3, s21, {56*4096}
    s_add_u32 s58, s57, s3
    s_add_u32 s58, s58, {1920*4096} ; z1
    s_lshl_b32 s3, s21, 18
    s_add_u32 s59, s57, s3          ; ab
    s_waitcnt lgkmcnt(0)
    s_mov_b32 s36, s18
    s_mov_b32 s37, s19
    s_mov_b32 s40, s16
    s_mov_b32 s41, s17
    """)
    lg.q = []
    ax = [AddrReg(AX + k) for k in range(4)]
    aw = [AddrReg(AW + k) for k in range(2)]
    main = []
    loads = []
    fills = []
    slot_ctr = [0]
    def newslot():
        s = slot_ctr[0] % NF; slot_ctr[0] += 1; return s
    def add_load(tag, fn, bar, slot=None): loads.append(dict(tag=tag, fn=fn, bar=bar, slot=slot))
    def M(text, frags=(), marks=(), name=None, slot=None):
        main.append(dict(kind="m", text=text, frags=list(frags), marks=list(marks), name=name, slot=slot))
    def BAR(name, marks=(), waits=()):
        main.append(dict(kind="b", text="s_barrier", frags=list(waits), marks=list(marks), name=name, slot=None))
    barname = {t: f"B{t}" for t in range(10)}
    barname.update({10: "B10", 11: "B10", 12: "B12", 13: "B12", 14: "B12", 15: "B12"})
    barname.update({t: "B14" for t in range(16, 24)})
    def ld_x(t, ks):
        def fn():
            p = pos(3*t) * 8192
            o = ax[ks].off(O, p)
            lg.op(f"ds_read_b128 {vr(XF+(t*4+ks)*4,4)}, v{AX+ks} offset:{o}", ("x", t, ks))
            return 1
        add_load(("x", t, ks), fn, barname[t])
    def ld_w(t, ks, T):
        s = newslot(); f = FIFO + 4*s
        def fn():
            p = pos(wunit(t)) * 8192
            if t < 16:
                o = aw[T].off(O, p + ks*2048 + 512) - 512
                lg.op(f"ds_read_b64_tr_b16 {vr(f,2)}, v{AW+T} offset:{o}", ("w", t, ks, T))
                lg.op(f"ds_read_b64_tr_b16 {vr(f+2,2)}, v{AW+T} offset:{o+512}", ("w", t, ks, T))
                return 2
            else:
                o = ax[ks].off(O, p + T*4096)
                lg.op(f"ds_read_b128 {vr(f,4)}, v{AX+ks} offset:{o}", ("w", t, ks, T))
                return 1
        add_load(("w", t, ks, T), fn, barname[t], s)
        return s
    def ld_ct(ph, T, bar):
        s = newslot(); f = FIFO + 4*s
        def fn():
            lg.op(f"ds_read_b64 {vr(f,2)}, v{CTA} offset:{ph*512+T*256}", ("ct", ph, T))
            return 1
        add_load(("ct", ph, T), fn, bar, s)
        return s
    def mm(acc, s, xf, first):
        return f"v_mfma_f32_32x32x16_bf16 {vr(acc,16)}, {vr(FIFO+4*s,4)}, {vr(xf,4)}, {'0' if first else vr(acc,16)}"
    BPOS = opt.get("k1_bpos", 9)
    BAR("B0")
    for t in range(8):
        for ks in range(4):
            xf = XF + (t*4+ks)*4
            first = (t == 0 and ks == 0)
            ld_x(t, ks)
            s1 = ld_w(t, ks, 1); s0 = ld_w(t, ks, 0)
            seq = [dict(text=f"v_mfma_f32_32x32x16_bf16 {vr(SQ,16)}, {vr(xf,4)}, {vr(xf,4)}, {'0' if first else vr(SQ,16)}", frags=[("x", t, ks)], name=f"S{t}{ks}"),
                   dict(text=mm(ACC[0]+16, s1, xf, first), frags=[("w", t, ks, 1)], name=f"M{t}_{ks}_1", slot=s1),
                   dict(text=mm(ACC[0], s0, xf, first), frags=[("w", t, ks, 0)], name=f"M{t}_{ks}_0", slot=s0)]
            for k, d in enumerate(seq):
                M(**d)
                if t < 7 and ks*3 + k + 1 == BPOS: BAR(f"B{t+1}")
    BAR("B8")
    def corr(ph, T, acc, bar, marks=()):
        s = ld_ct(ph, T, bar)
        M(f"v_mfma_f32_32x32x16_bf16 {vr(acc,16)}, {vr(FIFO+4*s,4)}, {vr(NM,4)}, {vr(acc,16)}", frags=[("ct", ph, T)], marks=marks, name=f"C{ph}_{T}", slot=s)
    corr(0, 0, ACC[0], "B8", marks=["NM"])
    corr(0, 1, ACC[0]+16, "B8")
    P2BAR = {(8, 0): "B9", (8, 3): "B10", (10, 2): "B12", (14, 0): "B14"}
    for t in range(8, 16):
        for ks in range(4):
            xf = XF + ((t-8)*4+ks)*4
            first = (t == 8 and ks == 0)
            for T in (0, 1):
                s = ld_w(t, ks, T)
                M(mm(ACC[1]+16*T, s, xf, first), frags=[("w", t, ks, T)], name=f"M{t}_{ks}_{T}", slot=s,
                  marks=(["SQ"] if first and T == 1 else []))
            if (t, ks) in P2BAR: BAR(P2BAR[(t, ks)])
    corr(1, 0, ACC[1], "B14")
    corr(1, 1, ACC[1]+16, "B14")
    BZPOS = opt.get("k1_bz", 6)
    for T in (0, 1):
        for t in range(16, 24):
            for ks in range(4):
                xf = XF + ((t-16)*4+ks)*4
                first = (t == 16 and ks == 0)
                s = ld_w(t, ks, T)
                M(mm(ACC[0]+16*T, s, xf, first), frags=[("w", t, ks, T)], name=f"M{t}_{ks}_{T}", slot=s,
                  marks=([f"Z2T{T}"] + (["AXADJ"] if T == 0 else []) if first else []))
                if T == 0 and (t-16)*4 + ks + 1 == BZPOS: BAR("Bz", marks=["PUB"], waits=[("st", 0)])
        corr(2, T, ACC[0]+16*T, "Bz")
    idx = {m["name"]: i for i, m in enumerate(main)}
    last_user = {}
    users = {}
    for i, m in enumerate(main):
        for tg in m["frags"]:
            users[tg] = i
    prev_in_slot = {}
    for ld in loads:
        g = idx[ld["bar"]]
        if ld["slot"] is not None:
            if ld["slot"] in prev_in_slot: g = max(g, users[prev_in_slot[ld["slot"]]])
            prev_in_slot[ld["slot"]] = ld["tag"]
        ld["gate"] = g
    def F(text, gate=None, cost=None):
        for ln in text.split("\n"):
            ln = ln.strip()
            if not ln: continue
            cst = cost if cost is not None else (2 if ln.split()[0] in hazfix.TRANS else 1)
            fills.append(dict(kind="v", text=ln, cost=cst, gate=idx[gate] if gate else 0))
    def FL(text, tag, gate=None): fills.append(dict(kind="l", text=text, tag=tag, cost=1, gate=idx[gate] if gate else 0))
    def FW(tag): fills.append(dict(kind="w", tag=tag, cost=0, gate=0))
    def MK(name): fills.append(dict(kind="k", name=name, cost=0, gate=0))
    def FRAW(text, cost=4): fills.append(dict(kind="r", text=text, cost=cost, gate=0))
    MEAN = 27
    F(f"""
    v_mul_f32 v{MEAN}, {f2u(1.0/512)}, v{ACC[0]+16+12}
    v_cvt_pk_bf16_f32 v1, v{MEAN}, v{MEAN}
    v_xor_b32 v1, 0x80008000, v1
    v_cndmask_b32_e64 v{NM}, 0, v1, s[86:87]
    v_cndmask_b32_e64 v{NM+1}, 0, v1, s[86:87]
    """, gate="B8")
    MK("NM")
    t_ = ""
    for k in range(8): t_ += f"v_cndmask_b32_e64 v{SQ+2*k}, v{SQ+2*k}, v{SQ+2*k+1}, s[60:61]\n"
    for k in range(4): t_ += f"v_cndmask_b32_e64 v{SQ+4*k}, v{SQ+4*k}, v{SQ+4*k+2}, s[62:63]\n"
    for k in range(2): t_ += f"v_cndmask_b32_e64 v{SQ+8*k}, v{SQ+8*k}, v{SQ+8*k+4}, s[82:83]\n"
    t_ += f"v_cndmask_b32_e64 v1, v{SQ}, v{SQ+8}, s[84:85]\nv_cndmask_b32_e64 v2, v{SQ}, v{SQ+8}, s[84:85]\n"
    F(t_, gate="B8")
    MK("SQ")
    F(f"""
    v_permlane32_swap_b32 v1, v2
    v_cndmask_b32_e64 v1, v1, v2, s[80:81]
    v_mul_f32 v1, {f2u(1.0/512)}, v1
    v_fma_f32 v1, -v{MEAN}, v{MEAN}, v1
    v_cvt_pk_bf16_f32 v1, v1, v1
    v_lshlrev_b32 v1, 16, v1
    v_add_f32 v1, {EPS}, v1
    v_cvt_pk_bf16_f32 v1, v1, v1
    v_lshlrev_b32 v1, 16, v1
    v_sqrt_f32 v1, v1
    v_cvt_pk_bf16_f32 v1, v1, v1
    v_lshlrev_b32 v{SD}, 16, v1
    v_rcp_f32 v{R}, v{SD}
    v_mul_f32 v1, v{R}, v{R}
    v_mul_f32 v{K0}, {C0}, v{R}
    v_mul_f32 v1, v1, v{R}
    v_mul_f32 v{K1}, {C1}, v1
    """)
    FRAW(f"buffer_load_dword v{TAG}, off, s[40:43], s44 sc1", 1)
    gcount = [0]
    def group(ph, acc, T, q, gate, gelu, stats):
        tm = TMP[gcount[0] & 1]; gcount[0] += 1
        u = [acc + 16*T + 4*q + k for k in range(4)]
        t_ = ""
        if gelu:
            for k in range(4): t_ += f"v_mul_f32 v{tm[k]}, v{u[k]}, v{u[k]}\n"
            for k in range(4): t_ += f"v_fma_f32 v{tm[k]}, v{K1}, v{tm[k]}, v{K0}\n"
            for k in range(4): t_ += f"v_mul_f32 v{tm[k]}, v{u[k]}, v{tm[k]}\n"
            for k in range(4): t_ += f"v_exp_f32 v{tm[k]}, v{tm[k]}\n"
            for k in range(4): t_ += f"v_fma_f32 v{tm[k]}, v{tm[k]}, v{SD}, v{SD}\n"
            for k in range(4): t_ += f"v_rcp_f32 v{tm[k]}, v{tm[k]}\n"
            for k in range(4): t_ += f"v_mul_f32 v{u[k]}, v{u[k]}, v{tm[k]}\n"
        else:
            for k in range(4): t_ += f"v_mul_f32 v{u[k]}, v{u[k]}, v{R}\n"
        t_ += f"v_cvt_pk_bf16_f32 v{tm[0]}, v{u[0]}, v{u[1]}\nv_cvt_pk_bf16_f32 v{tm[1]}, v{u[2]}, v{u[3]}\n"
        F(t_, gate=gate)
        base = (8*T + 2*q) * 256
        FL(f"ds_write_b16 v{SWE}, v{tm[0]} offset:{base}", ("st", ph))
        FL(f"ds_write_b16_d16_hi v{SWO}, v{tm[0]} offset:{base+64}", ("st", ph))
        if stats:
            F("\n".join(f"v_add_f32 v{S_}, v{S_}, v{u[k]}\nv_fma_f32 v{Q_}, v{u[k]}, v{u[k]}, v{Q_}" for k in range(2)))
        FL(f"ds_write_b16 v{SWE}, v{tm[1]} offset:{base+128}", ("st", ph))
        FL(f"ds_write_b16_d16_hi v{SWO}, v{tm[1]} offset:{base+192}", ("st", ph))
        if stats:
            F("\n".join(f"v_add_f32 v{S_}, v{S_}, v{u[k]}\nv_fma_f32 v{Q_}, v{u[k]}, v{u[k]}, v{Q_}" for k in range(2, 4)))
    def after(name, k=2):
        i = min(idx[name] + k, len(main) - 1)
        return main[i]["name"]
    def copyout(ph, acc, T, sbase, partial):
        b = acc + 16*T
        if partial:
            F(f"""
            v_lshrrev_b32 v{b+8}, 5, v0
            v_lshlrev_b32 v{b+9}, 9, v{b+8}
            v_lshlrev_b32 v{b+8}, 15, v{b+8}
            v_sub_u32 v{b+9}, v{SR}, v{b+9}
            v_sub_u32 v{b+8}, v{GA}, v{b+8}
            """)
        for i in range(2):
            ra = b + 9 if (partial and i == 1) else SR
            FL(f"ds_read_b128 {vr(b+4*i,4)}, v{ra} offset:{(2*T+i)*1024}", ("co", ph, T, i))
        def stores():
            for i in range(2):
                FW(("co", ph, T, i))
                ga = b + 8 if (partial and i == 1) else GA
                FRAW(f"s_add_u32 s3, {sbase}, {(2*T+i)*16*4096}\nbuffer_store_dwordx4 {vr(b+4*i,4)}, v{ga}, s[36:39], s3 offen", 2)
        return stores
    g0 = main[max(idx[after("C0_0")], idx["B9"])]["name"]
    for T in (0, 1):
        for q in range(4 if T == 0 else 3):
            group(0, ACC[0], T, q, g0 if T == 0 else after("C0_1"), True, True)
        MK(f"Z2T{T}")
    F(f"""
    v_permlane32_swap_b32 v{S_}, v{Q_}
    v_add_f32 v{S_}, v{S_}, v{Q_}
    """)
    FRAW(f"""s_mov_b32 s46, 4000
    .Lk1_cnonce:
    s_waitcnt vmcnt(0)
    v_readfirstlane_b32 s45, v{TAG}
    s_cmp_lg_u32 s45, 0
    s_cbranch_scc1 .Lk1_cnonce_ok
    s_sub_u32 s46, s46, 1
    s_cmp_eq_u32 s46, 0
    s_cbranch_scc1 .Lk1_cnonce_ok
    buffer_load_dword v{TAG}, off, s[40:43], s44 sc1
    s_branch .Lk1_cnonce
    .Lk1_cnonce_ok:
    buffer_store_dwordx2 v[{S_}:{TAG}], v{PA}, s[36:39], s56 offen sc1""", 4)
    MK("PUB")
    d = STG[1] - STG[0]
    F(f"v_add_u32 v{SWE}, {d}, v{SWE}\nv_add_u32 v{SWO}, {d}, v{SWO}\nv_add_u32 v{SR}, {d}, v{SR}")
    pend = None
    for T in (0, 1):
        for q in range(4 if T == 0 else 3):
            group(1, ACC[1], T, q, after(f"C1_{T}"), z1gelu, False)
            if q == 0 and pend: pend(); pend = None
        pend = copyout(1, ACC[1], T, "s58", T == 1)
    d = STG[2] - STG[1]
    F(f"v_add_u32 v{SWE}, {d}, v{SWE}\nv_add_u32 v{SWO}, {d}, v{SWO}")
    for T in (0, 1):
        for q in range(4):
            group(2, ACC[0], T, q, after(f"C2_{T}"), False, False)
            if q == 0 and pend:
                pend(); pend = None
                if T == 0: F(f"v_add_u32 v{SR}, {d}, v{SR}")
        pend = copyout(2, ACC[0], T, "s59", False)
    pend()
    FB = {1: opt.get("k1_f1", 7), 2: opt.get("k1_f2", 5)}
    li = 0; fi = 0
    done_marks = set()
    issued = set()
    def emit_fill(f):
        if f["kind"] == "v": O.append(f["text"])
        elif f["kind"] == "l": lg.op(f["text"], f["tag"])
        elif f["kind"] == "w": lg.wait(f["tag"])
        elif f["kind"] == "k": done_marks.add(f["name"])
        elif f["kind"] == "r": c(f["text"])
    stamp_at = {"B0": 1, "B4": 1, "B8": 1, "C1_1": 1, "Bz": 1, "C2_1": 1}
    for i, m in enumerate(main):
        for mk in m["marks"]:
            if mk == "AXADJ": continue
            while mk not in done_marks:
                f = fills[fi]
                assert f["gate"] < i, (m["name"], mk, f)
                emit_fill(f); fi += 1
        for tg in m["frags"]:
            if tg[0] != "st":
                while tg not in issued:
                    ld = loads[li]
                    assert ld["gate"] < i, (m["name"], ld["tag"], ld["gate"], i)
                    if ld["tag"][:2] == ("w", 16) and ("adj" not in done_marks):
                        for k in range(4): O.append(f"v_subrev_u32 v{AX+k}, s23, v{AX+k}")
                        done_marks.add("adj")
                    ld["fn"](); issued.add(ld["tag"]); li += 1
            lg.wait(tg)
        O.append(m["text"])
        if opt.get("stamp") == 1 and m["name"] in stamp_at:
            O.append(f"s_memtime s[{64+2*sp.n}:{65+2*sp.n}]"); sp.n += 1
        lmax = 18 if m["name"] in ("B0", "B8") else (6 if i < idx["B8"] else 4)
        n = 0
        while li < len(loads) and loads[li]["gate"] <= i and n < lmax:
            ld = loads[li]
            if ld["tag"][:2] == ("w", 16) and ("adj" not in done_marks):
                for k in range(4): O.append(f"v_subrev_u32 v{AX+k}, s23, v{AX+k}")
                done_marks.add("adj")
            n += ld["fn"](); issued.add(ld["tag"]); li += 1
        if m["kind"] == "m":
            bud = FB[1] if i < idx["Bz"] else FB[2]
            while fi < len(fills) and fills[fi]["gate"] <= i and bud >= max(fills[fi]["cost"], 0) and (bud > 0 or fills[fi]["cost"] == 0):
                bud -= fills[fi]["cost"]
                emit_fill(fills[fi]); fi += 1
    while fi < len(fills):
        emit_fill(fills[fi]); fi += 1
    O.insert(0, "s_lshl_b32 s23, s22, 12")
    fixed, nadd = hazfix.fix(O)
    print("k1 compute: nops added", nadd, "lines", len(fixed))
    for x in fixed: a(x)
    if opt.get("stamp") == 1:
        a("s_waitcnt vmcnt(0)")
        sp.dump(Lexit, "s22")
    a.label(Lexit)
    a("s_endpgm")
    return a.text(), descriptor(name), f"; @launch kernel={name} grid=(256,1,1) block=(512,1,1) lds=163840"
```

```python
import sys
from asmlib import *

WS_XT = 0
XT_ROWS = 2816
XT_BYTES = XT_ROWS * 4096
Z1_ROW0 = 1920
WS_Y1 = 0xC00000
WS_Y2 = 0xE00000
WS_UT = 0x1000000
WS_ST = 0x1400000
WS_USED = 0x1500000

OPT = dict(k2_nocompute=0, k2_noload=0, k2_prio=0)

def gen_k2(opt=OPT):
    a = Asm()
    name = "k2_kernel"
    kernel_header(a, name)
    Lexit = ".Lk2_exit"
    a(f"""
    s_cmp_ge_u32 s2, 256
    s_cbranch_scc1 {Lexit}
    s_load_dwordx4 s[4:7], s[0:1], 8
    s_load_dwordx4 s[8:11], s[0:1], 56
    s_load_dwordx2 s[12:13], s[0:1], 96
    v_lshrrev_b32 v1, 6, v0
    s_and_b32 s14, s2, 7
    s_lshr_b32 s15, s2, 3
    v_readfirstlane_b32 s19, v1
    v_and_b32 v0, 63, v0
    s_cmp_ge_u32 s14, 4
    s_cbranch_scc1 .Lk2_isg
    ; y tiles
    s_and_b32 s16, s14, 1
    s_lshl_b32 s16, s16, 3
    s_lshr_b32 s3, s15, 2
    s_add_u32 s16, s16, s3
    s_lshr_b32 s17, s14, 1
    s_lshl_b32 s17, s17, 2
    s_and_b32 s3, s15, 3
    s_add_u32 s17, s17, s3
    s_mov_b32 s18, 0
    s_waitcnt lgkmcnt(0)
    s_cmp_lt_u32 s14, 2
    s_cselect_b32 s4, s4, s6
    s_cselect_b32 s5, s5, s7
    s_branch .Lk2_dec
    .Lk2_isg:
    s_cmp_ge_u32 s15, 28
    s_cbranch_scc1 {Lexit}
    s_mul_i32 s3, s15, 37
    s_lshr_b32 s3, s3, 8
    s_sub_u32 s16, s14, 4
    s_lshl_b32 s16, s16, 2
    s_add_u32 s16, s16, s3
    s_mul_i32 s3, s3, 7
    s_sub_u32 s17, s15, s3
    s_add_u32 s17, s17, 8
    s_mov_b32 s18, 1
    s_waitcnt lgkmcnt(0)
    s_mov_b32 s4, s8
    s_mov_b32 s5, s9
    .Lk2_dec:
    s_cmp_lt_u32 s19, 4
    s_cbranch_scc1 .Lk2_compute
    """)
    VO = 8
    exp = opt.get("exp", 0)
    pitchW, pitchX, kincW, kincX = 4096, 4096, 128, 128
    if exp == 2: pitchX = 4224
    if exp == 3: pitchW = pitchX = 4224
    if exp == 4: pitchW = pitchX = 128; kincW = 2048*128; kincX = 2816*128
    if exp == 6: pitchX = 128; kincX = 2816*128
    if exp == 7: pitchW = pitchX = 4096+256
    if exp == 8: pitchW = pitchX = 4096+512
    if exp in (3, 4, 7, 8):
        a(f"""
        s_lshr_b32 s3, s14, 1
        s_min_u32 s3, s3, 2
        s_add_u32 s3, s3, 2
        s_lshl_b32 s3, s3, 24
        s_add_u32 s4, s12, s3
        s_addc_u32 s5, s13, 0
        """)
    a(f"""
    s_sub_u32 s19, s19, 4
    s_mov_b32 s22, {0x800000 if exp not in (3,4,7,8) else 0x1000000}
    s_mov_b32 s40, {pitchW}
    s_mov_b32 s41, {kincW}
    s_cmp_lt_u32 s19, 2
    s_cselect_b32 s20, s4, s12
    s_cselect_b32 s21, s5, s13
    s_cselect_b32 s22, s22, {XT_BYTES if exp == 0 else 0x1000000}
    s_cselect_b32 s40, s40, {pitchX}
    s_cselect_b32 s41, s41, {kincX}
    s_mov_b32 s23, 0x20000
    s_cselect_b32 s3, s16, s17
    s_lshl_b32 s3, s3, 7
    s_and_b32 s24, s19, 1
    s_lshl_b32 s24, s24, 6
    s_add_u32 s3, s3, s24
    v_lshrrev_b32 v1, 3, v0
    v_and_b32 v2, 7, v0
    v_lshrrev_b32 v3, 4, v0
    v_xor_b32 v4, v2, v3
    v_xor_b32 v5, 4, v4
    v_add_u32 v1, s3, v1
    v_mul_lo_u32 v1, v1, s40
    v_lshl_add_u32 v4, v4, 4, v1
    v_lshl_add_u32 v5, v5, 4, v1
    s_lshl_b32 s40, s40, 3
    """)
    for q in range(8):
        a(f"s_mul_i32 s3, s40, {q}")
        a(f"s_sub_u32 s3, s3, {(q&3)*1024}")
        a(f"v_add_u32 v{VO+q}, s3, v{5 if q&1 else 4}")
    a("s_lshl_b32 s24, s19, 13")
    for sl in range(4):
        for h in range(2):
            a(f"s_add_u32 s{32+2*sl+h}, s24, {sl*32768+h*4096}")
    a("s_mov_b32 s28, 0")
    if exp == 5:
        a("s_lshl_b32 s28, s15, 7")
    if opt.get("k2_prio") == 1:
        a("s_setprio 1")
    def issue(sl):
        if opt.get("k2_noload"):
            return
        for h in range(2):
            a(f"s_mov_b32 m0, s{32+2*sl+h}")
            a("s_nop 0")
            for qq in range(4):
                q = h*4+qq
                off = f" offset:{qq*1024}" if qq else ""
                a(f"buffer_load_dwordx4 v{VO+q}, s[20:23], s28 offen{off} lds")
        a("s_add_u32 s28, s28, s41")
        if exp == 5:
            a("s_and_b32 s28, s28, 4095")
    for sl in range(4):
        issue(sl)
    a("s_waitcnt vmcnt(24)")
    a("s_barrier")
    a("s_mov_b32 s29, 7")
    a.label(".Lk2_ld_loop")
    for sl in range(4):
        a("s_waitcnt vmcnt(16)")
        a("s_barrier")
        issue(sl)
    a("""
    s_sub_u32 s29, s29, 1
    s_cmp_lg_u32 s29, 0
    s_cbranch_scc1 .Lk2_ld_loop
    s_waitcnt vmcnt(16)
    s_barrier
    s_waitcnt vmcnt(8)
    s_barrier
    s_waitcnt vmcnt(0)
    s_barrier
    s_endpgm
    """)
    AA, AB, AA2, AB2 = 16, 20, 24, 28
    F = 32
    ACC = 96
    Z = 160
    ZP = 224
    a.label(".Lk2_compute")
    if opt.get("stamp"):
        a("s_memtime s[40:41]")
        a("s_memrealtime s[42:43]")
    a(f"""
    s_lshr_b32 s24, s19, 1          ; wr
    s_and_b32 s25, s19, 1           ; wc
    s_mov_b32 s20, s12
    s_mov_b32 s21, s13
    s_mov_b32 s22, {WS_USED}
    s_mov_b32 s23, 0x20000
    v_and_b32 v1, 31, v0            ; row
    v_lshrrev_b32 v2, 5, v0         ; h
    v_bfe_u32 v3, v0, 1, 3
    v_xor_b32 v3, v3, v2
    v_lshlrev_b32 v3, 4, v3
    v_lshl_add_u32 v3, v1, 7, v3    ; row*128 + p*16
    s_cmp_eq_u32 s18, 1
    s_cselect_b32 s26, 0, 16384     ; region A
    s_cselect_b32 s27, 16384, 0     ; region B
    s_lshl_b32 s3, s24, 13
    s_add_u32 s26, s26, s3
    s_lshl_b32 s3, s25, 13
    s_add_u32 s27, s27, s3
    v_add_u32 v{AA}, s26, v3
    v_add_u32 v{AB}, s27, v3
    """)
    for s in range(1, 4):
        a(f"v_xor_b32 v{AA+s}, {s*32}, v{AA}")
        a(f"v_xor_b32 v{AB+s}, {s*32}, v{AB}")
    for s in range(4):
        a(f"v_add_u32 v{AA2+s}, 0x10000, v{AA+s}")
        a(f"v_add_u32 v{AB2+s}, 0x10000, v{AB+s}")
    a(f"""
    s_cmp_eq_u32 s18, 1
    s_cbranch_scc1 .Lk2_gpro
    s_and_b32 s30, s17, 3
    s_lshl_b32 s30, s30, 7
    s_lshl_b32 s3, s24, 6
    s_add_u32 s30, s30, s3
    s_lshl_b32 s31, s16, 7
    s_lshl_b32 s3, s25, 6
    s_add_u32 s31, s31, s3
    v_add_u32 v4, s31, v1
    v_lshlrev_b32 v4, 10, v4
    s_mov_b32 s3, {WS_Y1}
    s_cmp_lt_u32 s17, 4
    s_cselect_b32 s3, s3, {WS_Y2}
    s_lshl_b32 s30, s30, 1
    s_add_u32 s3, s3, s30
    v_lshl_add_u32 v4, v2, 4, v4
    v_add_u32 v4, s3, v4
    v_add_u32 v5, {32*1024}, v4     ; bj=1
    """)
    for r in range(64):
        a(f"v_mov_b32 v{ACC+r}, 0")
    a(f"""
    s_branch .Lk2_start
    .Lk2_gpro:
    s_lshl_b32 s30, s16, 7
    s_lshl_b32 s3, s24, 6
    s_add_u32 s30, s30, s3
    s_sub_u32 s31, s17, 8
    s_lshl_b32 s31, s31, 7
    s_lshl_b32 s3, s25, 6
    s_add_u32 s31, s31, s3
    s_mov_b32 s36, s10
    s_mov_b32 s37, s11
    s_mov_b32 s38, 4096
    s_mov_b32 s39, 0x20000
    s_lshl_b32 s30, s30, 1
    v_lshlrev_b32 v6, 3, v2         ; h*8 bytes
    v_add_u32 v6, s30, v6
    """)
    for bi in range(2):
        for q in range(4):
            a(f"buffer_load_dwordx2 {vr(F+(bi*4+q)*2,2)}, v6, s[36:39], 0 offen offset:{(bi*32+8*q)*2}")
    a(f"""
    v_add_u32 v4, s31, v1
    v_lshlrev_b32 v4, 12, v4        ; f*4096
    v_add_u32 v7, v4, v6
    v_add_u32 v7, {Z1_ROW0*4096}, v7
    v_add_u32 v8, {32*4096}, v7
    v_lshl_add_u32 v4, v2, 4, v4
    s_add_u32 s3, s30, {WS_UT}
    v_add_u32 v4, s3, v4
    v_add_u32 v5, {32*4096}, v4
    """)
    for bi in range(2):
        for bj in range(2):
            for q in range(4):
                a(f"buffer_load_dwordx2 {vr(ZP+((bi*2+bj)*4+q)*2,2)}, v{7+bj}, s[20:23], 0 offen offset:{(bi*32+8*q)*2}")
    a("s_waitcnt vmcnt(16)")
    for bi in range(2):
        for q in range(4):
            for d in range(2):
                src = F+(bi*4+q)*2+d
                for bj in range(2):
                    dst = ACC+(bi*2+bj)*16+q*4+d*2
                    a(f"v_lshlrev_b32 v{dst}, 16, v{src}")
                    a(f"v_and_b32 v{dst+1}, 0xffff0000, v{src}")
    a.label(".Lk2_start")
    if opt.get("k2_prio") == 2:
        a("s_setprio 1")
    def reads(sl, sub):
        ra = (AA if sl < 2 else AA2) + sub
        rb_ = (AB if sl < 2 else AB2) + sub
        o = (sl & 1) * 32768
        f = F + sub*16
        return [f"ds_read_b128 {vr(f,4)}, v{ra} offset:{o}",
                f"ds_read_b128 {vr(f+8,4)}, v{rb_} offset:{o}",
                f"ds_read_b128 {vr(f+12,4)}, v{rb_} offset:{o+4096}",
                f"ds_read_b128 {vr(f+4,4)}, v{ra} offset:{o+4096}"]
    def mf(sub, bi, bj):
        f = F + sub*16
        c = ACC + (bi*2+bj)*16
        return f"v_mfma_f32_32x32x16_bf16 {vr(c,16)}, {vr(f+bi*4,4)}, {vr(f+8+bj*4,4)}, {vr(c,16)}"
    order = [(0,0),(0,1),(1,1),(1,0)]
    BAR = 9
    sched = {9:[0,1], 10:[2,3], 11:[4], 12:[5], 13:[6], 14:[7], 15:[8], 0:[9], 1:[10], 2:[11], 3:[12,13], 4:[14], 5:[15]}
    WAITS = {0: 5, 4: 6, 8: 4}
    def kstep(sl, last=False):
        nx = (sl+1) & 3
        L = []
        for m in range(16):
            if m in WAITS:
                L.append(f"s_waitcnt lgkmcnt({WAITS[m]})")
            L.append(mf(m//4, *order[m%4]))
            if m == BAR:
                L.append("s_waitcnt lgkmcnt(0)")
                if not last:
                    L.append("s_barrier")
            for j in sched.get(m, []):
                if m >= BAR:
                    if not last:
                        L.append(reads(nx, j//4)[j%4])
                else:
                    L.append(reads(sl, j//4)[j%4])
        if opt.get("k2_nocompute"):
            L = [x for x in L if not x.startswith("v_mfma") and not x.startswith("ds_read")]
        return L
    a("s_barrier")
    for j in range(9):
        a(reads(0, j//4)[j%4])
    a("s_mov_b32 s29, 7")
    a.label(".Lk2_cp_loop")
    for sl in range(4):
        for x in kstep(sl):
            a(x)
    a("""
    s_sub_u32 s29, s29, 1
    s_cmp_lg_u32 s29, 0
    s_cbranch_scc1 .Lk2_cp_loop
    s_waitcnt vmcnt(0)
    """)
    tail = []
    for sl in range(4):
        tail += kstep(sl, last=(sl == 3))
    fill = []
    for i in range(32):
        fill.append(f"v_lshlrev_b32 v{Z+2*i}, 16, v{ZP+i}")
        fill.append(f"v_and_b32 v{Z+2*i+1}, 0xffff0000, v{ZP+i}")
    for x in interleave(tail, fill, per=1):
        a(x)
    a("s_nop 7")
    a("s_nop 7")
    a("s_cmp_eq_u32 s18, 0")
    a("s_cbranch_scc1 .Lk2_pack")
    for i in range(32):
        a(f"v_pk_mul_f32 {vr(ACC+2*i,2)}, {vr(ACC+2*i,2)}, {vr(Z+2*i,2)}")
    a.label(".Lk2_pack")
    for bi in range(2):
        for bj in range(2):
            c = ACC + (bi*2+bj)*16
            p = F + (bi*2+bj)*8
            for i in range(8):
                a(f"v_cvt_pk_bf16_f32 v{p+i}, v{c+2*i}, v{c+2*i+1}")
            a("s_nop 1")
            for k in (0, 2):
                a(f"v_permlane32_swap_b32 v{p+2*k}, v{p+2*k+2}")
                a(f"v_permlane32_swap_b32 v{p+2*k+1}, v{p+2*k+3}")
            for k in (0, 2):
                a(f"buffer_store_dwordx4 {vr(p+2*k,4)}, v{4+bj}, s[20:23], 0 offen offset:{(bi*32+8*k)*2}")
    if opt.get("stamp"):
        a(f"""
        s_memtime s[44:45]
        s_memrealtime s[46:47]
        s_load_dwordx2 s[48:49], s[0:1], 88
        s_waitcnt lgkmcnt(0)
        s_cmp_lg_u32 s19, 0
        s_cbranch_scc1 {Lexit}
        s_and_b32 s3, s2, 0x1f
        s_cmp_lg_u32 s3, 5
        s_cbranch_scc1 {Lexit}
        s_lshr_b32 s3, s2, 5
        s_lshl_b32 s3, s3, 4
        s_sub_u32 s44, s44, s40
        s_sub_u32 s46, s46, s42
        s_mov_b32 s50, 256
        s_mov_b32 s51, 0x20000
        v_mov_b32 v0, s44
        v_mov_b32 v1, s46
        v_mov_b32 v2, s42
        v_mov_b32 v3, s2
        v_mov_b32 v4, s3
        buffer_store_dwordx4 v[0:3], v4, s[48:51], 0 offen
        """)
    a.label(Lexit)
    a("s_endpgm")
    return a.text(), descriptor(name), f"; @launch kernel={name} grid=(256,1,1) block=(512,1,1) lds=131072"


class VM:
    def __init__(self, a):
        self.a = a; self.ops = []
    def issue(self, ins, tag):
        self.a(ins); self.ops.append(tag)
    def wait(self, tag):
        idx = max(i for i, t in enumerate(self.ops) if t == tag)
        n = len(self.ops) - 1 - idx
        assert n <= 63, n
        self.a(f"s_waitcnt vmcnt({n})")
        self.ops = self.ops[idx+1:]

class Stamps:
    def __init__(self, a, on):
        self.a = a; self.on = on; self.n = 0
    def mark(self):
        if not self.on: return
        assert self.n < 8
        self.a(f"s_memtime s[{64+2*self.n}:{65+2*self.n}]")
        self.n += 1
    def dump(self, Lexit, wave_s, wsel=0, sel=5):
        if not self.on: return
        a = self.a
        self.mark()
        a(f"""
        s_load_dwordx2 s[88:89], s[0:1], 88
        s_waitcnt lgkmcnt(0)
        s_cmp_lg_u32 {wave_s}, {wsel}
        s_cbranch_scc1 {Lexit}
        s_and_b32 s3, s2, 0x3f
        s_cmp_lg_u32 s3, {sel}
        s_cbranch_scc1 {Lexit}
        s_lshr_b32 s3, s2, 6
        s_lshl_b32 s3, s3, 5
        s_add_u32 s3, s3, 128
        s_mov_b32 s90, 256
        s_mov_b32 s91, 0x20000
        v_mov_b32 v8, s3
        """)
        for i in range(8):
            if 0 < i < self.n:
                a(f"s_sub_u32 s3, s{64+2*i}, s64")
                a(f"v_mov_b32 v{i}, s3")
            else:
                a(f"v_mov_b32 v{i}, {'s2' if i == 0 else 0}")
        a("buffer_store_dwordx4 v[0:3], v8, s[88:91], 0 offen")
        a("buffer_store_dwordx4 v[4:7], v8, s[88:91], 0 offen offset:16")

def gen_k3(opt=OPT):
    a = Asm()
    name = "k3_kernel"
    kernel_header(a, name)
    Lexit = ".Lk3_exit"
    vm = VM(a)
    a(f"""
    s_cmp_ge_u32 s2, 256
    s_cbranch_scc1 {Lexit}
    s_load_dwordx2 s[4:5], s[0:1], 0
    s_load_dwordx4 s[8:11], s[0:1], 72
    s_load_dwordx2 s[12:13], s[0:1], 96
    """)
    sp = Stamps(a, opt.get("stamp"))
    sp.mark()
    a(f"""
    v_lshrrev_b32 v1, 6, v0
    s_and_b32 s14, s2, 7
    s_lshr_b32 s15, s2, 3
    v_readfirstlane_b32 s19, v1
    v_and_b32 v0, 63, v0
    s_lshl_b32 s16, s14, 2
    s_lshr_b32 s3, s15, 3
    s_add_u32 s16, s16, s3          ; tb 0..31
    s_and_b32 s17, s15, 7           ; db 0..7
    s_cmp_lt_u32 s19, 4
    s_cbranch_scc1 .Lk3_compute
    s_sub_u32 s19, s19, 4
    v_lshrrev_b32 v1, 3, v0
    v_and_b32 v2, 7, v0
    v_lshlrev_b32 v6, 4, v2
    v_bfe_u32 v3, v0, 4, 1
    v_lshlrev_b32 v3, 2, v3
    v_xor_b32 v2, v2, v3
    v_lshlrev_b32 v2, 4, v2
    s_lshl_b32 s24, s19, 5          ; k0 = 32w
    v_add_u32 v3, s24, v1
    v_lshl_add_u32 v4, v3, 12, v2   ; U: k*4096 + chunk*16
    v_lshl_add_u32 v5, v3, 10, v2   ; W: k*1024 + chunk*16
    s_lshl_b32 s3, s16, 7
    s_add_u32 s3, s3, {WS_UT}
    v_add_u32 v4, s3, v4
    s_lshl_b32 s18, s17, 7
    v_add_u32 v5, s18, v5
    s_lshl_b32 s3, s16, 6
    s_lshl_b32 s26, s19, 4
    s_add_u32 s3, s3, s26
    v_add_u32 v3, s3, v1
    v_lshl_add_u32 v6, v3, 10, v6
    v_add_u32 v6, s18, v6
    v_add_u32 v7, 0x2000, v6
    """)
    VU, VW = 8, 12
    for q in range(4):
        a(f"v_add_u32 v{VU+q}, {q*(8*4096-1024)}, v4")
        a(f"v_add_u32 v{VW+q}, {q*(8*1024-1024)}, v5")
    a(f"""
    s_lshl_b32 s25, s19, 12
    s_waitcnt lgkmcnt(0)
    s_mov_b32 s20, s12
    s_mov_b32 s21, s13
    s_mov_b32 s22, {WS_USED}
    s_mov_b32 s23, 0x20000
    s_mov_b32 s28, s8
    s_mov_b32 s29, s9
    s_mov_b32 s30, {896*1024}
    s_mov_b32 s31, 0x20000
    s_mov_b32 s6, {2048*1024}
    s_mov_b32 s7, 0x20000
    s_mov_b32 s32, s10
    s_mov_b32 s33, s11
    s_mov_b32 s34, {2048*1024}
    s_mov_b32 s35, 0x20000
    s_mov_b32 s26, {WS_Y1}
    s_mov_b32 s27, {WS_Y2}
    """)
    def dma(st):
        sl = st % 5
        a(f"s_add_u32 m0, s25, {sl*32768}")
        a(f"s_mov_b32 s36, {st*128*4096}")
        for q in range(4):
            off = f" offset:{q*1024}" if q else ""
            vm.issue(f"buffer_load_dwordx4 v{VU+q}, s[20:23], s36 offen{off} lds", st)
        a(f"s_add_u32 m0, s25, {sl*32768+16384}")
        a(f"s_mov_b32 s36, {st*128*1024}")
        for q in range(4):
            off = f" offset:{q*1024}" if q else ""
            vm.issue(f"buffer_load_dwordx4 v{VW+q}, s[28:31], s36 offen{off} lds", st)
    XY = 32
    PRE = 64
    FR = 80
    LA = opt.get("k3_la", 2)
    nxt = 0
    def issue_upto(n):
        nonlocal nxt
        while nxt <= n and nxt < 7:
            dma(nxt); nxt += 1
    def pre_code():
        L = []
        for i in range(8):
            x, y1, y2 = XY+i, XY+8+i, XY+16+i
            L += f"""v_lshlrev_b32 v28, 16, v{y1}
            v_lshlrev_b32 v29, 16, v{y2}
            v_and_b32 v30, 0xffff0000, v{y1}
            v_and_b32 v31, 0xffff0000, v{y2}
            v_sub_f32 v28, v28, v29
            v_sub_f32 v30, v30, v31
            v_cvt_pk_bf16_f32 v28, v28, v30
            v_lshlrev_b32 v29, 16, v28
            v_and_b32 v30, 0xffff0000, v28
            v_lshlrev_b32 v31, 16, v{x}
            v_and_b32 v28, 0xffff0000, v{x}
            v_add_f32 v29, v29, v31
            v_add_f32 v30, v30, v28
            v_cvt_pk_bf16_f32 v28, v29, v30
            v_lshlrev_b32 v{PRE+2*i}, 16, v28
            v_and_b32 v{PRE+2*i+1}, 0xffff0000, v28""".split("\n")
        return [x.strip() for x in L]
    issue_upto(LA)
    a(f"""
    v_lshrrev_b32 v1, 3, v0
    v_and_b32 v2, 7, v0
    v_lshlrev_b32 v2, 1, v2
    v_xor_b32 v2, v2, v1
    v_lshlrev_b32 v2, 4, v2
    v_lshl_add_u32 v2, v1, 8, v2
    v_add_u32 v26, s25, v2
    v_xor_b32 v27, 16, v26
    """)
    for st in range(7):
        vm.wait(st)
        a("s_barrier")
        issue_upto(min(st + 1 + LA, st + 4))
        if nxt == 7 and "xy" not in vm.ops and st < 6 and not getattr(vm, "xy", False):
            vm.xy = True
            for g in range(2):
                vm.issue(f"buffer_load_dwordx4 {vr(XY+4*g,4)}, v{6+g}, s[4:7], 0 offen", "xy")
                vm.issue(f"buffer_load_dwordx4 {vr(XY+8+4*g,4)}, v{6+g}, s[20:23], s26 offen", "xy")
                vm.issue(f"buffer_load_dwordx4 {vr(XY+16+4*g,4)}, v{6+g}, s[20:23], s27 offen", "xy")
    vm.wait("xy")
    for x in pre_code(): a(x)
    a("s_barrier")
    for g in range(2):
        for e in range(2):
            a(f"ds_read_b128 {vr(FR+g*8+e*4,4)}, v{26+e} offset:{g*2048}")
    for g in range(2):
        a(f"s_waitcnt lgkmcnt({2-2*g})")
        for i in range(8):
            a(f"v_add_f32 v{PRE+8*g+i}, v{PRE+8*g+i}, v{FR+8*g+i}")
        for i in range(4):
            a(f"v_cvt_pk_bf16_f32 v{XY+4*g+i}, v{PRE+8*g+2*i}, v{PRE+8*g+2*i+1}")
        a(f"buffer_store_dwordx4 {vr(XY+4*g,4)}, v{6+g}, s[32:35], 0 offen")
    a("s_endpgm")
    a.label(".Lk3_compute")
    a(f"""
    v_bfe_u32 v1, v0, 2, 2          ; r
    v_lshrrev_b32 v2, 5, v0         ; h
    v_lshl_add_u32 v2, v2, 3, v1    ; row = 8h + r
    v_lshlrev_b32 v2, 7, v2
    v_bfe_u32 v3, v0, 4, 1          ; G&1
    v_bfe_u32 v1, v0, 3, 1          ; r>>1
    v_lshl_add_u32 v3, v1, 1, v3
    v_lshl_add_u32 v2, v3, 5, v2
    v_and_b32 v1, 3, v0
    v_lshl_add_u32 v2, v1, 3, v2
    s_lshr_b32 s3, s19, 1
    s_lshl_b32 s3, s3, 6
    v_xor_b32 v16, s3, v2
    v_add_u32 v16, 16384, v16
    s_and_b32 s3, s19, 1
    s_lshl_b32 s3, s3, 6
    v_xor_b32 v17, s3, v2
    v_add_u32 v18, 0x10000, v16
    v_add_u32 v19, 0x10000, v17
    v_add_u32 v20, 0x20000, v16
    v_add_u32 v21, 0x20000, v17
    v_and_b32 v1, 31, v0
    v_lshrrev_b32 v2, 5, v0
    v_and_b32 v3, 7, v0
    v_xor_b32 v2, v2, v3
    v_lshlrev_b32 v2, 4, v2
    v_lshl_add_u32 v2, v1, 8, v2
    s_and_b32 s3, s19, 1
    s_lshl_b32 s3, s3, 13
    s_lshr_b32 s36, s19, 1
    s_lshl_b32 s36, s36, 7
    s_add_u32 s3, s3, s36
    v_add_u32 v22, s3, v2
    v_xor_b32 v23, 32, v22
    v_xor_b32 v24, 64, v22
    v_xor_b32 v25, 96, v22
    """)
    FR = 32
    ACC = 160
    def reads(j):
        st, ks = divmod(j, 8)
        sl = st % 5
        f = FR + (j % 16) * 8
        b = (sl >> 1) * 2
        o = (sl & 1) * 32768 + ks * 2048
        return [f"ds_read_b64_tr_b16 {vr(f,2)}, v{16+b} offset:{o}",
                f"ds_read_b64_tr_b16 {vr(f+2,2)}, v{16+b} offset:{o+512}",
                f"ds_read_b64_tr_b16 {vr(f+4,2)}, v{17+b} offset:{o}",
                f"ds_read_b64_tr_b16 {vr(f+6,2)}, v{17+b} offset:{o+512}"]
    def mf(j):
        f = FR + (j % 16) * 8
        src = "0" if j == 0 else vr(ACC,16)
        return f"v_mfma_f32_32x32x16_bf16 {vr(ACC,16)}, {vr(f,4)}, {vr(f+4,4)}, {src}"
    a("s_barrier")
    sp.mark()
    for j in range(8):
        for x in reads(j): a(x)
    for st in range(7):
        if st < 6:
            for ks in range(4):
                a(f"s_waitcnt lgkmcnt({min(15, 4*(7-ks))})")
                a(mf(st*8+ks))
            a("s_waitcnt lgkmcnt(0)")
            a("s_barrier")
            if st in (1, 3, 5): sp.mark()
            for ks in range(4, 8):
                a(mf(st*8+ks))
                for x in reads((st+1)*8 + 2*(ks-4)) + reads((st+1)*8 + 2*(ks-4)+1): a(x)
        else:
            for ks in range(8):
                a(f"s_waitcnt lgkmcnt({min(15, 4*(7-ks))})")
                a(mf(st*8+ks))
    sp.mark()
    a("s_nop 7")
    a("s_nop 3")
    for q in range(4):
        a(f"ds_write_b128 v{22+q}, {vr(ACC+q*4,4)} offset:0")
    a("""
    s_waitcnt lgkmcnt(0)
    s_barrier
    """)
    sp.dump(Lexit, "s19")
    a.label(Lexit)
    a("s_endpgm")
    return a.text(), descriptor(name), f"; @launch kernel={name} grid=(256,1,1) block=(512,1,1) lds=163840"

import k1gen
def gen_k1(opt=OPT):
    return k1gen.gen_k1(opt, VM, Stamps)

HEADER = open("parallel_sum__spectral_fnet__mixer_gmlp__prompt.s.ref").read().split("; Override")[0]

def build(kernels):
    txt = HEADER
    for k in kernels:
        txt += k[2] + "\n"
    txt += '.amdgcn_target "amdgcn-amd-amdhsa--gfx950"\n.text\n'
    for k in kernels:
        txt += k[0]
    txt += '.section .rodata,"a"\n'
    for k in kernels:
        txt += k[1]
    return txt

if __name__ == "__main__":
    opt = dict(OPT)
    out = sys.argv[1]
    which = sys.argv[2]
    for kv in sys.argv[3:]:
        k, v = kv.split("=")
        opt[k] = int(v)
    ks = []
    for w in which.split(","):
        ks.append(globals()["gen_" + w](opt))
    open(out, "w").write(build(ks))
```

```python
from gzlib import *

HPOLL, HPUB, HC, HT = 10, 11, 12, 13
CPOLL, CPUB, CC, CT_ = 10, 11, 13, 15
HTAG = 55
AX = 4
TPOS = {0: [0, 1, 2, 3, 4, 5, 6, 7], 1: [16, 17, 0, 1, 2, 3, 4, 5], 2: [6, 7, 8, 9, 10, 11, 16, 17]}
DUMP = 12 * 8192
XS = [12, 14, 8, 10]
CT2 = MISC + 3072
RTN = MISC + 9216
R_NM, R_R, R_SD = 0, 512, CT2 + 1024 - RTN
ZO = lambda b: (b >> 1)*512 + (b & 1)*128
def M16(acc, a, b, first=False): return f"v_mfma_f32_16x16x32_bf16 {vr(acc,4)}, {vr(a,4)}, {vr(b,4)}, {'0' if first else vr(acc,4)}"
ROT = f"""
    s_lshr_b32 s3, s2, 6
    s_lshl1_add_u32 @R, s3, {sJ}
    s_and_b32 @R, @R, 7
"""

class H:
    def __init__(self, ctx, sd):
        self.ctx = ctx; self.e = Stream(ctx, "h", sd); self.thr = {}
    def trypub(self, n=None):
        e = self.e
        L = self.ctx.trypub(e.nvm if n is None else n, HPUB, HT)
        for x in L[:-1]: e(x)
        e.lds(L[-1], "pub")
    def pub(self, n):
        self.e(f"v_mov_b32 v{HT}, {n}")
        self.e.lds(f"ds_write_b32 v{HPUB}, v{HT}", "pub")
    def pre(self, goff, tag, reg=HPOLL): self.e.lds(f"ds_read_b32 v{HC}, v{reg} offset:{goff}", tag)
    def chk(self, goff, need, tag, reg=HPOLL, n=None):
        self.ctx.check(self.e, HC, reg, goff, need, tag, self.ctx.trypub(self.e.nvm if n is None else n, HPUB, HT))
    def wait(self, goff, need, reg=HPOLL, n=None):
        self.pre(goff, "pc", reg); self.chk(goff, need, "pc", reg, n)
    def pubw(self, val):
        self.e(f"v_mov_b32 v{HT}, {val}")
        self.e.lds(f"ds_write_b32 v{HPUB}, v{HT} offset:{G_PW}", "pub")


def XPAT(d, t):
    return f"""
    v_lshrrev_b32 v{t}, 4, v0
    v_xor_b32 v{d}, v{t}, v0
    v_and_b32 v{d}, 7, v{d}
    v_lshlrev_b32 v{d}, 4, v{d}
    v_lshrrev_b32 v{t}, 5, v0
    v_lshl_add_u32 v{d}, v{t}, 13, v{d}
    v_bfe_u32 v{t}, v0, 3, 2
    v_lshl_add_u32 v{d}, v{t}, 10, v{d}
    v_xor_b32 v{d+1}, 64, v{d}
    v_add_u32 v{d+2}, {4096-2048}, v{d}
    v_add_u32 v{d+3}, {16384+4096-3072}, v{d+1}
    v_add_u32 v{d+1}, {16384-1024}, v{d+1}
    """
G_PX = G_PD + 1024
XB = 8 * 8192

def p1_helper(ctx, sd, hooks):
    opt = ctx.opt
    h = H(ctx, sd); e = h.e; thr = h.thr
    Y = sd == "y"
    VX, VXX, VW = 4, 44, 8
    NON = 52
    sKB = "s47"
    hk = lambda nm: hooks.get(nm, lambda h: None)(h)
    if opt.get("hprio0"): e(f"s_setprio {opt['hprio0']}")
    e(XPAT(VXX, 1))
    e(f"""
    v_lshrrev_b32 v1, 3, v0
    v_and_b32 v2, 7, v0
    v_bfe_u32 v3, v0, 4, 1
    v_lshlrev_b32 v3, 2, v3
    v_xor_b32 v3, v2, v3
    v_lshlrev_b32 v3, 4, v3
    v_mul_u32_u24 v{VW}, 3584, v1
    v_xor_b32 v{VW+1}, 32, v3
    v_add_u32 v{VW+1}, v{VW}, v{VW+1}
    v_add_u32 v{VW+1}, {8*3584-1024}, v{VW+1}
    v_add_u32 v{VW}, v{VW}, v3
    s_min_u32 s78, {sJ}, 6          ; jm
    s_mul_i32 s77, {sW}, {16*3584}
    v_and_b32 v3, 3, v0
    v_mul_u32_u24 v3, 260, v3
    v_add_u32 v{HPOLL}, {MISC}, v3
    s_lshl_b32 s3, {sW}, 8
    s_add_u32 s3, s3, {MISC}
    v_lshl_add_u32 v{HPUB}, v0, 2, s3
    v_mov_b32 v{HT}, 0
    """)
    e.lds(f"ds_write_b32 v{HPUB}, v{HT}", "z")
    e.lds(f"ds_write_b32 v{HPUB}, v{HT} offset:{G_PW}", "z")
    e(ROT.replace("@R", "s76") if not opt.get("norot1") else "s_mov_b32 s76, 0")
    e(f"""
    s_lshl_b32 s79, s78, 7
    s_add_u32 s79, s79, s77
    s_lshl2_add_u32 s77, {sRB}, {sW}
    @SRD
    s_add_u32 s44, s79, {0 if Y else 7*128}     ; z1 base
    s_add_u32 s46, s44, 1792                    ; z2 base
    s_lshl_b32 s45, s77, 15
    s_lshl_b32 s48, {sW}, 11        ; e*2048
    s_lshl_b32 s49, {sW}, 12        ; e*4096
    """)
    e.lq = []
    e.slabel(".Lh_srd")
    CAP = opt.get("cap", 16)
    want = []
    chain = [True]
    def credit(n):
        if not chain[0]: return
        done = e.nvm - (CAP - n)
        if done <= 0: return
        e.wc(f"vmcnt({CAP - n})")
        k = [t for t in want if t[0] <= done]
        if k:
            for t in k: want.remove(t)
            L = [x.replace("s79", "s65").replace("s3", "s64") for x in ctx.trypub(e.nvm, HPUB, HT)]
            for x in L[:-1]: e(x)
            e.lds(L[-1], "pub")
            for t in k:
                if t[1]: e.slabel(t[1])
    def kb(u):
        e(f"s_add_u32 {sKB}, s76, {u}")
        e(f"s_and_b32 {sKB}, {sKB}, 7")
    def dmax(u):
        kb(u)
        e(f"s_lshl_b32 s3, {sKB}, 7")
        e(f"s_add_u32 m0, s49, {XS[u&3]*8192}")
        e(f"s_add_u32 s3, s3, s45")
        for q in range(4):
            if not q & 1: credit(2)
            e.vm(f"buffer_load_dwordx4 v{VXX+q}, {SX}, s3 offen{' offset:%d' % (q*1024) if q else ''} lds")
        thr[("x", u)] = e.nvm
    def dma(U, u):
        wd = U == 1
        kb(u)
        e(f"s_mul_i32 s3, {sKB}, {128 if wd else 64*3584}")
        e(f"s_add_u32 m0, s48, {TPOS[U][u]*8192}")
        e(f"s_add_u32 s3, s3, {'s46' if U == 0 else ('s77' if U == 1 else 's44')}")
        V = VX if wd else VW; S = SWD if wd else SWIN
        credit(2)
        e.vm(f"buffer_load_dwordx4 v{V}, {S}, s3 offen lds")
        e.vm(f"buffer_load_dwordx4 v{V+1}, {S}, s3 offen offset:1024 lds", (U, u))
        thr[(U, u)] = e.nvm
    X_ = lambda s_: ("x", s_)
    todo = [X_(0), (0, 0), X_(1), (0, 1), X_(2), (0, 2), X_(3), (0, 3), (0, 4), -1, X_(4), (0, 5), -2, X_(5), (0, 6),
            -3, X_(6), (0, 7), -4, X_(7), (1, 0), (1, 1), "nonce", 2, (1, 2), (1, 3), 4, (1, 4), (1, 5), 6, (1, 6), (1, 7),
            7, (2, 0), (2, 2), (2, 3), 8, (2, 1), (2, 4), (2, 5)]
    PUBS = {(1, 1), (1, 4), (1, 7), (2, 1), (2, 5)}
    def step():
        it = todo.pop(0)
        if isinstance(it, int):
            if it > 0: h.wait(G_PC, it)
            else: h.wait(G_PX, -it, reg=HPUB)
            return
        if it == "nonce": e.vm(f"buffer_load_dword v{NON}, off, {SDBG}, 0 sc1", "nonce"); return
        if it[0] == "x": dmax(it[1])
        else: dma(*it)
        u = it[1]
        if it[0] in ("x", 0) and ("x", u) in thr and (0, u) in thr:
            thr[(0, u)] = e.nvm; want.append((e.nvm, f".Lh_s{u}"))
        if it in PUBS: want.append((e.nvm, None))
    hk("h_first")
    while e.nvm + (4 if todo[0][0] == "x" else 2) <= CAP: step()
    e.slabel(".Lh_issued")
    e(f"""
    v_lshrrev_b32 v3, 4, v0
    v_xor_b32 v3, v2, v3
    v_lshlrev_b32 v3, 4, v3
    v_lshl_add_u32 v{VX}, v1, 10, v3
    v_xor_b32 v{VX+1}, 64, v{VX}
    v_add_u32 v{VX+1}, {8*1024-1024}, v{VX+1}
    s_lshl2_add_u32 s77, {sJ}, {sW}
    s_lshl_b32 s77, s77, 14
    """)
    ZA = 64
    NM, R, SD, K0, K1 = 14, 16, 18, 20, 22
    CSV = 24
    SQP = 40
    S_, TAG, Q_, S1, Q1 = 54, HTAG, 56, 50, 51
    DA, PA, SCW, SCR, GA, CA, RA = 57, 58, 59, 60, 61, 62, 63
    TM = 100
    ZP = 108
    PL = 128
    setup2 = f"""
    s_lshl_b32 s3, {sW}, 13
    s_add_u32 s3, s3, {DUMP}
    v_lshl_add_u32 v{DA}, v0, 4, s3
    v_and_b32 v1, 15, v0                        ; n
    v_lshrrev_b32 v2, 4, v0                     ; G
    v_lshrrev_b32 v3, 5, v0
    v_lshl_add_u32 v3, v3, 4, v1
    v_lshlrev_b32 v{PA}, 4, v3
    v_and_b32 v3, 1, v2
    v_lshl_add_u32 v{PA}, v3, 3, v{PA}
    v_and_b32 v{RA}, 12, v0
    v_add_u32 v{RA}, v{RA}, v1
    v_lshrrev_b32 v{SCW}, 1, v{RA}
    v_lshrrev_b32 v{SCR}, 5, v0
    v_xor_b32 v{SCW}, v{SCW}, v{SCR}
    v_and_b32 v{SCW}, 7, v{SCW}
    v_lshlrev_b32 v{SCW}, 4, v{SCW}
    v_lshl_add_u32 v{SCW}, v3, 3, v{SCW}
    v_lshl_add_u32 v{SCW}, v{RA}, 7, v{SCW}
    s_lshl_b32 s79, {sW}, 5
    s_add_u32 s79, s79, s3
    v_xor_b32 v{SCW}, s79, v{SCW}
    s_lshl_b32 s79, {sW}, 7
    s_add_u32 s79, s79, {RTN}
    v_lshl_add_u32 v{RA}, v{RA}, 2, s79
    s_lshl_b32 s79, {sW}, 6
    s_xor_b32 s79, s79, {CT2 + 128}
    v_lshl_add_u32 v{CA}, v2, 4, s79
    v_bfe_u32 v3, v0, 2, 2
    v_lshl_add_u32 v1, v2, 3, v3                ; row
    v_bfe_u32 v3, v1, 1, 3
    v_bfe_u32 v{SCR}, v0, 1, 1
    v_xor_b32 v3, v3, v{SCR}
    v_lshlrev_b32 v3, 4, v3
    v_lshl_add_u32 v3, v1, 7, v3
    v_and_b32 v1, 1, v0
    v_lshl_add_u32 v3, v1, 3, v3
    v_add_u32 v{SCR}, s3, v3
    v_mul_u32_u24 v1, {XP}, v2
    v_and_b32 v2, 3, v0
    v_bfe_u32 v3, v0, 2, 1
    v_lshl_or_b32 v2, v3, 4, v2
    v_bfe_u32 v3, v0, 3, 1
    v_lshl_or_b32 v2, v3, 2, v2
    v_lshl_add_u32 v{GA}, v2, 4, v1
    s_lshl_b32 s61, {sRB}, 2
    s_add_u32 s61, s61, {sW}
    s_lshl_b32 s58, s61, 13
    s_add_u32 s58, s58, {WS_ST}
    s_add_u32 s59, s58, 4096
    s_add_u32 s78, s78, {0 if Y else 7}         ; zi
    s_lshl_b32 s60, s78, 9
    s_add_u32 s60, s60, s58
    ; flag
    s_lshl_b32 s62, s61, 2
    s_lshl_b32 s3, s78, 8
    s_add_u32 s62, s62, s3
    s_add_u32 s62, s62, {WS_F + 16*256}
    s_mul_i32 s61, s61, {4*XP}
    s_lshl_b32 s3, s78, 10
    s_add_u32 s61, s61, s3
    s_add_u32 s61, s61, {WS_XT + 1024*16}
    v_mov_b32 v{S_}, 0
    v_mov_b32 v{Q_}, 0
    v_mov_b32 v{S1}, 0
    v_mov_b32 v{Q1}, 0
    v_add_u32 v{TM}, {R_SD & 0xffffffff}, v{RA}
    v_xor_b32 v{TM+1}, 64, v{CA}
    """
    assert (CT2 & 255) == 0
    e(setup2)
    hk("h_setup")
    e("s_barrier")
    while todo: step()
    chain[0] = False
    h.trypub()
    hk("h_t3")
    h.wait(G_PD, 2)
    e.slabel(".Lh_dump")
    if opt.get("hprio"): e(f"s_setprio {opt['hprio']}")
    e.lds(f"ds_read2_b32 {vr(R,2)}, v{RA} offset0:{R_R//4} offset1:{R_R//4+4}", "rt")
    e.lds(f"ds_read2_b32 {vr(NM,2)}, v{RA} offset0:0 offset1:4", "rt")
    e.lds(f"ds_read2_b32 {vr(SD,2)}, v{TM} offset0:0 offset1:4", "rt")
    for q in range(4, 8):
        if not q & 1:
            c = q >> 1
            e.lds(f"ds_read_b128 {vr(CSV+4*c,4)}, v{CA if c == 2 else TM+1}", ("cs", c))
        e.lds(f"ds_read_b128 {vr(ZA+4*q,4)}, v{DA} offset:{(q-4)*1024}", ("d", q))
    e.lwait("rt")
    for rt in range(2):
        e(f"""
        v_mul_f32 v1, v{R+rt}, v{R+rt}
        v_mul_f32 v{K0+rt}, {C0}, v{R+rt}
        v_mul_f32 v1, v1, v{R+rt}
        v_mul_f32 v{K1+rt}, {C1}, v1
        """)
    def gelu(q):
        rt = q & 1; c = q >> 1
        tm = [TM + (q & 1)*4 + k for k in range(4)]
        u = [ZA + 4*q + k for k in range(4)]
        e.lwait(("d", q))
        for k in range(4): e(f"v_fma_f32 v{u[k]}, v{NM+rt}, v{CSV+4*c+k}, v{u[k]}")
        for k in range(4): e(f"v_mul_f32 v{tm[k]}, v{u[k]}, v{u[k]}")
        for k in range(4): e(f"v_fma_f32 v{tm[k]}, v{K1+rt}, v{tm[k]}, v{K0+rt}")
        for k in range(4): e(f"v_mul_f32 v{tm[k]}, v{u[k]}, v{tm[k]}")
        for k in range(4): e(f"v_exp_f32 v{tm[k]}, v{tm[k]}")
        for k in range(4): e(f"v_fma_f32 v{tm[k]}, v{tm[k]}, v{SD+rt}, v{SD+rt}")
        for k in range(4): e(f"v_rcp_f32 v{tm[k]}, v{tm[k]}")
        for k in range(4): e(f"v_mul_f32 v{u[k]}, v{u[k]}, v{tm[k]}")
        for k in range(4):
            e(f"v_add_f32 v{S1 if rt else S_}, v{S1 if rt else S_}, v{u[k]}")
            e(f"v_fma_f32 v{Q1 if rt else Q_}, v{u[k]}, v{u[k]}, v{Q1 if rt else Q_}")
    e.vwait("nonce")
    ctx.nonce(e, NON)
    e(f"""
    v_mov_b32 v{TAG}, {sNONCE}
    v_add_u32 v{NON}, {G_PD}, v{HPUB}
    """)
    for q in range(4, 8):
        gelu(q)
        if q == 5: h.trypub()
    h.wait(0, 3, reg=NON)
    e.lds(f"ds_read_b128 {vr(SQP,4)}, v{DA} offset:6144", "sq")
    for k in range(2): e.lds(f"ds_read_b128 {vr(ZP+4*k,4)}, v{DA} offset:{4096+k*1024}", "zp")
    e.lwait("sq")
    e(f"""
    v_add_f32 v{S_}, v{S_}, v{SQP}
    v_add_f32 v{S1}, v{S1}, v{SQP+2}
    v_add_f32 v{Q_}, v{Q_}, v{SQP+1}
    v_add_f32 v{Q1}, v{Q1}, v{SQP+3}
    v_permlane32_swap_b32 v{S_}, v{S1}
    v_permlane32_swap_b32 v{Q_}, v{Q1}
    v_add_f32 v{S_}, v{S_}, v{S1}
    v_add_f32 v{Q_}, v{Q_}, v{Q1}
    v_permlane16_swap_b32 v{S_}, v{Q_}
    v_add_f32 v{S_}, v{S_}, v{Q_}
    """)
    e.vm(f"buffer_store_dwordx2 v[{S_}:{TAG}], v{PA}, {SWS}, s60 offen sc1", "gr")
    e.slabel(".Lh_gran")
    hk("h_gran")
    h.trypub()
    h.pre(G_PC, "pc")
    e.lwait("zp")
    for q in range(8):
        for k in range(2):
            a, b = ZA + 4*q + 2*k, ZA + 4*q + 2*k + 1
            p = b
            if q < 4: p = ZP + 2*q + k
            else: e(f"v_cvt_pk_bf16_f32 v{b}, v{a}, v{b}")
            e(f"v_lshlrev_b32 v{a}, 16, v{p}")
            e(f"v_and_b32 v{b}, 0xffff0000, v{p}")
    e(f"v_lshlrev_b32 v{PA}, 4, v0")
    h.chk(G_PC, 9, "pc")
    dma(2, 6); dma(2, 7)
    hk("h_prepoll")
    e(f"v_mov_b32 v{HT}, {e.nvm}")
    e.lwaitall()
    e.slabel(".Lh_poll")
    for q in range(7):
        e(f"buffer_load_dwordx4 {vr(PL+4*q,4)}, v{PA}, {SWS}, {'s58' if q < 4 else 's59'} offen offset:{(q&3)*1024} sc1")
    if opt.get("pub7", 1):
        e(f"s_waitcnt vmcnt(7)")
        e(f"ds_write_b32 v{HPUB}, v{HT}")
    for q in range(7):
        e(f"s_waitcnt vmcnt({6-q})")
        b = PL + 4*q
        if q == 0:
            if not opt.get("pub7", 1): e(f"ds_write_b32 v{HPUB}, v{HT}")
            e(f"v_min_u32 v1, v{b+1}, v{b+3}")
            e(f"v_max_u32 v2, v{b+1}, v{b+3}")
        else:
            e(f"v_min3_u32 v1, v1, v{b+1}, v{b+3}")
            e(f"v_max3_u32 v2, v2, v{b+1}, v{b+3}")
            e(f"v_add_f32 v{PL}, v{PL}, v{b}")
            e(f"v_add_f32 v{PL+2}, v{PL+2}, v{b+2}")
    A, B = PL, PL+2
    e(f"""
    v_cmp_ne_u32 vcc, {sNONCE}, v1
    v_cmp_ne_u32 s[64:65], {sNONCE}, v2
    s_or_b64 vcc, vcc, s[64:65]
    s_cbranch_scc0 .Lh_poll_ok_@S
    s_cmp_eq_u32 {sBUD}, 0
    s_cbranch_scc1 .Lh_poll_ok_@S
    s_sub_u32 {sBUD}, {sBUD}, 16
    s_max_i32 {sBUD}, {sBUD}, 0
    s_sleep {opt.get("slph", 0)}
    s_branch .Lh_poll_@S
    .Lh_poll_ok_@S:
    s_waitcnt lgkmcnt(0)
    """)
    hk("h_postpoll")
    e(f"""
    v_mov_b32 v1, v{A}
    v_mov_b32 v2, v{B}
    v_permlane32_swap_b32 v{A}, v1
    v_permlane32_swap_b32 v{B}, v2
    v_add_f32 v{A}, v{A}, v1
    v_add_f32 v{B}, v{B}, v2
    v_mul_f32 v{A}, {f2u(1.0/896)}, v{A}
    v_mul_f32 v{B}, {f2u(1.0/896)}, v{B}
    v_fma_f32 v{B}, -v{A}, v{A}, v{B}
    v_cvt_pk_bf16_f32 v{A}, v{A}, v{B}
    v_and_b32 v{B}, 0xffff0000, v{A}
    v_add_f32 v{B}, {EPS}, v{B}
    v_cvt_pk_bf16_f32 v{B}, v{B}, v{B}
    v_lshlrev_b32 v{B}, 16, v{B}
    v_sqrt_f32 v{B}, v{B}
    v_lshlrev_b32 v{A}, 16, v{A}
    v_cvt_pk_bf16_f32 v{B}, v{B}, v{B}
    v_lshlrev_b32 v{B}, 16, v{B}
    v_rcp_f32 v{B}, v{B}
    v_mul_f32 v{A}, -v{A}, v{B}
    v_mov_b32 v{B+1}, v{B}
    v_mov_b32 v{A+1}, v{A}
    v_permlane16_swap_b32 v{B}, v{B+1}
    v_permlane16_swap_b32 v{A}, v{A+1}
    """)
    for q in range(8):
        c = q >> 1; rt = q & 1
        for k in range(4):
            z = ZA + 4*q + k
            e(f"v_fma_f32 v{z}, v{z}, v{B+rt}, v{A+rt}")
        e(f"v_cvt_pk_bf16_f32 v{ZP+2*q}, v{ZA+4*q}, v{ZA+4*q+1}")
        e(f"v_cvt_pk_bf16_f32 v{ZP+2*q+1}, v{ZA+4*q+2}, v{ZA+4*q+3}")
        x = (c*32) ^ (32 if rt else 0)
        if x: e(f"v_xor_b32 v{TM+(q&3)}, {x}, v{SCW}")
        e.lds(f"ds_write_b64 v{TM+(q&3) if x else SCW}, {vr(ZP+2*q,2)}" + (" offset:512" if rt else ""), "sw")
    for b in range(4):
        e(f"v_xor_b32 v{TM+4+2*(b&1)}, {b*32}, v{SCR}")
        e(f"v_xor_b32 v{TM+5+2*(b&1)}, {(b*32) ^ 32}, v{SCR}")
        e.lds(f"ds_read_b64_tr_b16 {vr(ZA+8*b,2)}, v{TM+4+2*(b&1)}", ("tr", b))
        e.lds(f"ds_read_b64_tr_b16 {vr(ZA+8*b+2,2)}, v{TM+5+2*(b&1)} offset:512", ("tr", b))
    for b in range(4):
        e.lwait(("tr", b))
        e.vm(f"buffer_store_dwordx4 {vr(ZA+8*b,4)}, v{GA}, {SWS}, s61 offen offset:{ZO(b)} sc1", "zst")
    e.slabel(".Lh_zst")
    h.pubw(4)
    hk("h_preflag")
    e.vwait("zst")
    e("s_mov_b64 exec, 1")
    e.vm(f"buffer_store_dword v{TAG}, off, {SWS}, s62 sc1")
    e("s_mov_b64 exec, -1")
    if opt.get("hprio"): e("s_setprio 0")
    e.slabel(".Lh_p1end")
    return h


XA, GA, RTA, CTW, CTR, VD = 4, 6, 7, 8, 9, 12
AD = 16
XRD, XWR = AD + 4, AD + 5
ONES = 24
CS = 28
FIFO = 32; NF = 8
ACC0, ACC1, XF = 96, 64, 128
CTAG = 12

def p1_compute(ctx, sd, thr, hooks):
    opt = ctx.opt
    O = Stream(ctx, "c", sd)
    Y = sd == "y"
    SQ, SM = ACC1 + 16, ACC1 + 24
    sXB, sXK = "s76", "s77"
    O(f"""
    v_and_b32 v1, 15, v0            ; n
    v_lshrrev_b32 v2, 4, v0         ; G
    v_and_b32 v3, 12, v0
    v_add_u32 v3, v3, v1
    v_and_b32 v14, 3, v0
    v_mul_u32_u24 v14, 260, v14
    v_add_u32 v{CPOLL}, {MISC}, v14
    s_lshl_b32 s3, {sW}, 8
    s_add_u32 s3, s3, {MISC+G_PC}
    v_lshl_add_u32 v{CPUB}, v0, 2, s3
    v_mov_b32 v{CT_}, 0
    """)
    O.lds(f"ds_write_b32 v{CPUB}, v{CT_}", "z")
    O.lds(f"ds_write_b32 v{CPUB}, v{CT_} offset:{G_PD-G_PC}", "z")
    O.lds(f"ds_write_b32 v{CPUB}, v{CT_} offset:{G_PX-G_PC}", "z")
    O("@SRD")
    O.lq = []
    O("s_barrier")
    O.slabel(".Lc_srd")
    def XR(s, kk, rt): return XF + ((s*2 + kk)*2 + rt)*4
    TRPAT = lambda base: f"""
    v_bfe_u32 v{AD+1}, v0, 2, 2         ; r
    v_lshrrev_b32 v{AD}, 4, v0
    v_lshl_add_u32 v{AD+1}, v{AD}, 3, v{AD+1}
    v_lshlrev_b32 v{AD+1}, 7, v{AD+1}   ; row*128
    v_bfe_u32 v{AD}, v0, 3, 1           ; bit1(r)
    v_lshl_or_b32 v{AD+1}, v{AD}, 6, v{AD+1}
    v_bfe_u32 v{AD}, v0, 4, 1           ; G&1
    v_lshl_or_b32 v{AD+1}, v{AD}, 5, v{AD+1}
    v_and_b32 v{AD}, 3, v0
    v_lshl_or_b32 v{AD+1}, v{AD}, 3, v{AD+1}
    s_lshl_b32 s3, {sW}, 5
    s_add_u32 s3, s3, {base}
    v_xor_b32 v{AD}, s3, v{AD+1}
    v_xor_b32 v{AD+1}, 32, v{AD}
    v_xor_b32 v{AD+2}, 64, v{AD}
    v_xor_b32 v{AD+3}, 96, v{AD}
    """
    O(TRPAT(0))
    O(f"""
    v_lshrrev_b32 v14, 1, v1
    v_xor_b32 v14, v14, v2
    v_lshlrev_b32 v14, 4, v14
    v_lshl_add_u32 v14, v1, 7, v14
    s_lshl_b32 s3, {sW}, 12
    s_add_u32 s3, s3, {XB}
    v_add_u32 v{XRD}, s3, v14
    v_xor_b32 v{XRD+1}, 64, v{XRD}
    v_mov_b32 v{ONES}, 0x3f803f80
    v_mov_b32 v{ONES+1}, 0x3f803f80
    v_mov_b32 v{ONES+2}, 0x3f803f80
    v_mov_b32 v{ONES+3}, 0x3f803f80
    s_lshl_b32 s3, {sW}, 13
    s_add_u32 s3, s3, {DUMP}
    v_lshl_add_u32 v{VD}, v0, 4, s3
    s_lshl_b32 s3, {sW}, 6
    s_add_u32 s3, s3, {CT2}
    v_lshl_add_u32 v{CTW}, v2, 4, s3
    v_lshl_add_u32 v{CTR}, v1, 2, s3
    v_lshrrev_b32 v14, 5, v0
    v_lshl_add_u32 v14, v14, 2, v3
    s_lshl_b32 s3, {sW}, 7
    s_add_u32 s52, s3, {RTN}
    v_lshl_add_u32 v{RTA}, v14, 2, s52
    s_mov_b32 s44, 0xAAAAAAAA
    s_mov_b32 s45, 0xAAAAAAAA
    s_mov_b32 s46, 0xCCCCCCCC
    s_mov_b32 s47, 0xCCCCCCCC
    s_mov_b32 s62, 0x00F0000F
    s_mov_b32 s63, 0xF0000F00
    s_mov_b32 s64, 0
    s_mov_b32 s65, -1
    s_lshl2_add_u32 s54, {sRB}, {sW}        ; 4rb+w
    """)
    SO = ["s48", "s49", "s50", "s51"]
    SZ = ["s66", "s67", "s68", "s69"]
    O(f"""
    v_mul_u32_u24 v{GA}, {XP}, v2
    v_and_b32 v14, 3, v0
    v_lshl_add_u32 v{GA}, v14, 4, v{GA}
    v_bfe_u32 v14, v0, 2, 1
    v_lshl_add_u32 v{GA}, v14, 8, v{GA}
    v_bfe_u32 v14, v0, 3, 1
    v_lshl_add_u32 v{GA}, v14, 6, v{GA}
    s_lshl_b32 s57, s54, 2
    s_lshl_b32 s3, {sJ}, 8
    s_add_u32 s3, s57, s3
    s_add_u32 s56, s3, {WS_F + (0 if Y else 8*256)}
    s_min_u32 s53, {sJ}, 6
    s_lshl_b32 s3, s53, 8
    s_add_u32 s57, s57, s3
    s_add_u32 s57, s57, {WS_F + (30 if Y else 37)*256}
    s_lshl_b32 s53, s53, 18         ; 8jm*32768
    s_lshl_b32 s3, s54, 9           ; (128rb+32w)*16
    s_add_u32 s53, s53, s3
    s_add_u32 s53, s53, {WS_Z1 + (0 if Y else 7*8*32768)}
    s_lshl_b32 s3, {sW}, 16
    """)
    for c in range(4):
        O(f"s_xor_b32 {SZ[c]}, s3, {c*65536}")
        O(f"s_add_u32 {SZ[c]}, {SZ[c]}, s53")
    O(f"""
    s_mul_i32 s54, s54, {4*XP}
    s_lshl_b32 s3, {sJ}, 10         ; f0*16 = 64jj*16
    s_add_u32 s54, s54, s3
    s_add_u32 s54, s54, {0 if Y else 512*16}
    s_and_b32 s3, {sW}, 1
    s_lshl_b32 s3, s3, 7
    s_and_b32 s55, {sW}, 2
    s_lshl_b32 s55, s55, 8
    s_or_b32 s3, s3, s55            ; ZO(w)
    """)
    for c in range(4):
        O(f"s_xor_b32 {SO[c]}, s3, {ZO(c)}")
        O(f"s_add_u32 {SO[c]}, {SO[c]}, s54")
    O("v_lshlrev_b32 v1, 7, v0")
    hooks.get("c_first", lambda O: None)(O)
    hooks.get("c_start", lambda O: None)(O)
    if opt.get("prio"): O(f"s_setprio {opt['prio']}")
    S = Sched(ctx, O, NF, FIFO)
    ad = [AddrReg(AD + k, 0) for k in range(8)]
    PD = opt.get("pred", 3)
    def CHK(name, goff, need):
        S.X(name, lambda: (ctx.check(O, CC, CPOLL, goff, need, ("pre", name)), O.slabel(".Lc_" + name)))
        S.main[-1]["chk"] = True
        S.insert_before(name, PD, dict(kind="x", fn=lambda: O.lds(f"ds_read_b32 v{CC}, v{CPOLL} offset:{goff}", ("pre", name)),
                                       frags=[], marks=[], name="P" + name))
    last_pub = {}
    def pub(val, off=0):
        assert val > last_pub.get(off, 0), (val, off); last_pub[off] = val
        O(f"v_mov_b32 v{CT_}, {val}")
        O.lds(f"ds_write_b32 v{CPUB}, v{CT_}" + (f" offset:{off}" if off else ""), "pub")
        return 1
    def PUBL(val): S.load(("pub", val), lambda: pub(val), None)
    state = dict(pat=0, nld=[0, 0, 0])
    def puball(U, val, off=0):
        assert state["nld"][U] == 64, state
        pub(val, off)
    def ld_w(U, u, kk, c, gate):
        sl = S.newslot(); f = FIFO + 4*sl; tag = (U, u, kk, c)
        def fn():
            state["nld"][U] += 1
            if U == 1:
                if state["pat"] == 0:
                    b = TPOS[1][0]*8192
                    O(f"""
                    v_and_b32 v{AD+2}, 15, v0
                    v_lshrrev_b32 v{AD}, 1, v{AD+2}
                    v_lshrrev_b32 v{AD+1}, 4, v0
                    v_xor_b32 v{AD}, v{AD}, v{AD+1}
                    v_lshlrev_b32 v{AD}, 4, v{AD}
                    v_lshl_add_u32 v{AD}, v{AD+2}, 7, v{AD}
                    s_lshl_b32 s3, {sW}, 11
                    s_add_u32 s3, s3, {b}
                    v_add_u32 v{AD}, s3, v{AD}
                    """)
                    for k in range(8):
                        if k: O(f"v_xor_b32 v{AD+k}, {(k&3)*2048 + (k>>2)*64}, v{AD}")
                        ad[k].base = b
                    state["pat"] = 1
                k = c + 4*kk
                o = ad[k].off(O, TPOS[U][u]*8192)
                O.lds(f"ds_read_b128 {vr(f,4)}, v{AD+k} offset:{o}", tag); return 1
            if U == 2 and state["pat"] == 1:
                b = TPOS[2][0]*8192
                O(TRPAT(b))
                for k in range(4): ad[k].base = b
                state["pat"] = 2
            p = TPOS[U][u] * 8192 + kk*4096
            o = ad[c].off(O, p, 512)
            O.lds(f"ds_read_b64_tr_b16 {vr(f,2)}, v{AD+c} offset:{o}", tag)
            O.lds(f"ds_read_b64_tr_b16 {vr(f+2,2)}, v{AD+c} offset:{o+512}", tag); return 2
        S.load(tag, fn, gate, sl)
        return f, tag
    def ld_x(s, gate, qs=range(4)):
        for q in qs:
            kk, rt = q >> 1, q & 1
            def fn(kk=kk, rt=rt, q=q):
                O.lds(f"ds_read_b128 {vr(XR(s, kk, rt),4)}, v{XRD+kk} offset:{XS[s&3]*8192 - XB + rt*2048}", ("x", s, kk, rt))
                return 1
            S.load(("x", s, kk, rt), fn, gate)
        if s < 4: S.load(("pubx", s), lambda: pub(s + 1, G_PX - G_PC), None)
    def AC(ACC, c, rt): return ACC + (c*2 + rt)*4
    BPOS = opt.get("bpos", 21)
    CHK("K0", G_SEQ, thr[(0, 0)])
    C7 = [0, 2, 3, 1]
    names = {}
    for s in range(8):
        g = f"K{s}"
        flat = []
        def stats(kk):
            L = []
            for rt in range(2):
                xf = XR(s, kk, rt); first = (s == 0 and kk == 0)
                L += [dict(text=M16(SQ+4*rt, xf, xf, first), name=f"S{s}{kk}{rt}a", frags=[("x", s, kk, rt)]),
                      dict(text=M16(SM+4*rt, ONES, xf, first), name=f"S{s}{kk}{rt}b")]
            return L
        ld_x(s, g)
        if s == 7: flat += stats(0) + stats(1)
        order = [(kk, c) for kk in range(2) for c in range(4)]
        if s == 7: order = [(kk, c) for c in C7 for kk in range(2)]
        for i_, (kk, c) in enumerate(order):
            first = (s == 0 and kk == 0)
            if s < 7 and c == 0: flat += stats(kk)
            f, tg = ld_w(0, s, kk, c, g)
            if c == 0: flat.append(dict(text=M16(CS, f, ONES, first), frags=[tg], name=f"C0_{s}_{kk}"))
            for rt in range(2):
                flat.append(dict(text=M16(AC(ACC0, c, rt), f, XR(s, kk, rt), first), frags=[tg], name=f"A0_{s}_{kk}_{c}_{rt}"))
        PUBL(s + 1)
        for k, d in enumerate(flat):
            S.M(**d)
            if s == 7: S.main[-1]["fb"] = opt.get("fb7", 3)
            if k == len(flat) - 1 - (BPOS if s < 7 else opt.get("ka0", 2)):
                if s < 7: CHK(f"K{s+1}", G_SEQ, thr[(0, s+1)])
                else: CHK("KA0", G_SEQ, thr[(1, 1)])
            if s == 7 and k == 3: CHK("KD", G_PC, 6)
    S.X("U1E", lambda: O.slabel(".Lc_U1E"))
    S.X("G1E", lambda: O.slabel(".Lc_G1E"), marks=["G1"])
    gates = {1: ["KA0", "KA0", "KA1", "KA1", "KA1", "KA2", "KA2", "KA2"],
             2: ["KB0", "KB0", "KB0", "KB0", "KB2", "KB2", "KB3", "KB3"]}
    chks = {(1, 1): ("KA1", (1, 4)), (1, 4): ("KA2", (1, 7)), (1, 7): ("KB0", (2, 1)),
            (2, 3): ("KB2", (2, 5)), (2, 5): ("KB3", (2, 7))}
    assert thr[(2, 1)] > thr[(2, 3)]
    for U in (1, 2):
        ACC = ACC1 if U == 1 else ACC0
        for u in range(8):
            order = [(kk, c) for kk in range(2) for c in range(4)]
            if u == 7: order = [(kk, c) for c in range(4) for kk in range(2)]
            for k, (kk, c) in enumerate(order):
                first = (u == 0 and kk == 0)
                f, tg = ld_w(U, u, kk, c, gates[U][u])
                if c == 0:
                    S.M(M16(CS, ONES, f, first) if U == 1 else M16(CS, f, ONES, first), frags=[tg], name=f"C{U}_{u}_{kk}",
                        marks=(["CSW1"] if first and U == 2 else []))
                for rt in range(2):
                    a = AC(ACC, c, rt); xf = XR(u, kk, rt)
                    S.M(M16(a, xf, f, first) if U == 1 else M16(a, f, xf, first), frags=[tg], name=f"A{U}_{u}_{kk}_{c}_{rt}")
                if k == 3 and (U, u) in chks: CHK(chks[(U, u)][0], G_SEQ, thr[chks[(U, u)][1]])
                if (U, u, k) == (2, 0, 6): CHK("KC1", G_PC, 12)
                if (U, u, k) == (2, 7, opt.get("kc2", 5)):
                    PD = 1.5
                    CHK("KC2", G_PC, 16)
                    S.main[-1]["marks"] = ["CSW2"]
            pv = {(1, 1): 9, (1, 3): 10, (1, 5): 11, (2, 1): 13, (2, 3): 14, (2, 5): 15}.get((U, u))
            if pv: PUBL(pv)
    S.X("END", lambda: O.slabel(".Lc_U3E"))
    LG = lambda c, rt: (f"A2_7_1_{c}_{rt}", min(2, 7 - 2*c - rt))
    MEAN = 14
    PDO = G_PD - G_PC
    S.F(f"""
    v_cndmask_b32_e64 v1, v{SQ}, v{SQ+1}, s[44:45]
    v_cndmask_b32_e64 v2, v{SQ+2}, v{SQ+3}, s[44:45]
    v_cndmask_b32_e64 v3, v{SQ+4}, v{SQ+5}, s[44:45]
    v_cndmask_b32_e64 v1, v1, v2, s[46:47]
    v_cndmask_b32_e64 v2, v{SQ+6}, v{SQ+7}, s[44:45]
    v_cndmask_b32_e64 v{MEAN}, v{SM}, v{SM+4}, s[64:65]
    v_cndmask_b32_e64 v3, v3, v2, s[46:47]
    v_cndmask_b32_e64 v1, 0, v1, s[62:63]
    v_cndmask_b32_e64 v3, 0, v3, s[62:63]
    v_mul_f32 v{MEAN}, {f2u(1.0/512)}, v{MEAN}
    v_permlane32_swap_b32 v1, v3
    v_add_f32 v1, v1, v3
    """, gate=("S711b", 2))
    S.FL(f"ds_write_b128 v{CTW}, {vr(CS,4)}", "ct", gate=("C0_7_1", 2))
    S.FX(lambda: pub(1, PDO), 2)
    CS1, NM, R, SD, K0, K1, TM, SP = ACC1, ACC1 + 4, ACC1 + 6, ACC1 + 8, ACC1 + 6, ACC1 + 10, ACC1 + 16, ACC1 + 12
    S.F(f"""
    v_mov_b32 v2, v1
    v_cvt_pk_bf16_f32 v3, v{MEAN}, v{MEAN}
    v_permlane16_swap_b32 v1, v2
    v_add_f32 v1, v1, v2
    v_mul_f32 v1, {f2u(1.0/512)}, v1
    v_fma_f32 v1, -v{MEAN}, v{MEAN}, v1
    v_cvt_pk_bf16_f32 v1, v1, v1
    v_lshlrev_b32 v1, 16, v1
    v_add_f32 v1, {EPS}, v1
    v_cvt_pk_bf16_f32 v1, v1, v1
    v_lshlrev_b32 v1, 16, v1
    v_sqrt_f32 v1, v1
    v_lshlrev_b32 v3, 16, v3
    v_cvt_pk_bf16_f32 v1, v1, v1
    v_lshlrev_b32 v{SD}, 16, v1
    v_rcp_f32 v{R}, v{SD}
    v_xor_b32 v{NM}, 0x80000000, v3
    v_add_u32 v{MEAN}, {R_SD & 0xffffffff}, v{RTA}
    """)
    S.FL(f"ds_write_b32 v{MEAN}, v{SD}", "rt")
    S.FL(f"ds_write_b32 v{RTA}, v{NM}", "rt")
    S.FL(f"ds_write_b32 v{RTA}, v{R} offset:{R_R}", "rt")
    for q in range(4, 8):
        S.FL(f"ds_write_b128 v{VD}, {vr(ACC0+4*q,4)} offset:{(q-4)*1024}", "dump", gate=(f"A0_7_1_{q>>1}_{q&1}", 2))
    S.FX(lambda: puball(0, 2, PDO), 2)
    S.FL(f"ds_read_b32 v{CS1}, v{CPOLL} offset:{G_PD}", "kc0")
    S.F(f"v_xor_b32 v2, 64, v{CTW}")
    S.F(f"""
    v_mov_b32 v{R+1}, v{R}
    v_mov_b32 v{NM+1}, v{NM}
    v_mov_b32 v{SD+1}, v{SD}
    v_permlane32_swap_b32 v{R}, v{R+1}
    v_permlane32_swap_b32 v{NM}, v{NM+1}
    v_permlane32_swap_b32 v{SD}, v{SD+1}
    """)
    def kk01(R, K0, K1):
        for rt in range(2):
            S.F(f"""
            v_mul_f32 v1, v{R+rt}, v{R+rt}
            v_mul_f32 v1, v1, v{R+rt}
            v_mul_f32 v{K0+rt}, {C0}, v{R+rt}
            v_mul_f32 v{K1+rt}, {C1}, v1
            """)
    def gelu(u, tm, cs, nm, k0, k1, sd_):
        t_ = ""
        for k in range(4): t_ += f"v_fma_f32 v{u[k]}, v{nm}, v{cs+k}, v{u[k]}\n"
        for k in range(4): t_ += f"v_mul_f32 v{tm[k]}, v{u[k]}, v{u[k]}\n"
        for k in range(4): t_ += f"v_fma_f32 v{tm[k]}, v{k1}, v{tm[k]}, v{k0}\n"
        for k in range(4): t_ += f"v_mul_f32 v{tm[k]}, v{u[k]}, v{tm[k]}\n"
        for k in range(4): t_ += f"v_exp_f32 v{tm[k]}, v{tm[k]}\n"
        for k in range(4): t_ += f"v_fma_f32 v{tm[k]}, v{tm[k]}, v{sd_}, v{sd_}\n"
        for k in range(4): t_ += f"v_rcp_f32 v{tm[k]}, v{tm[k]}\n"
        for k in range(4): t_ += f"v_mul_f32 v{u[k]}, v{u[k]}, v{tm[k]}\n"
        return t_
    kk01(R, K0, K1)
    for q in range(4):
        c, rt = q >> 1, q & 1
        u = [ACC0 + 4*q + k for k in range(4)]
        tm = [TM + 4*rt + k for k in range(4)]
        if q == 2: S.FW("cs1")
        t_ = gelu(u, tm, CS1 if c else CS, NM+rt, K0+rt, K1+rt, SD+rt)
        s_, q_ = SP + 2*rt, SP + 2*rt + 1
        for k in range(4):
            if c == 0 and k == 0: continue
            if c == 0 and k == 1:
                t_ += f"v_add_f32 v{s_}, v{u[0]}, v{u[1]}\nv_mul_f32 v{q_}, v{u[0]}, v{u[0]}\n"
            else: t_ += f"v_add_f32 v{s_}, v{s_}, v{u[k]}\n"
            t_ += f"v_fma_f32 v{q_}, v{u[k]}, v{u[k]}, v{q_}\n"
        S.F(t_, gate=(f"A0_7_1_1_{rt}", 1 - rt) if c else None)
        if q == 3: S.FL(f"ds_write_b128 v{VD}, {vr(SP,4)} offset:6144", "sq")
        p = ACC0 + 16 + 2*q
        S.F(f"v_cvt_pk_bf16_f32 v{p}, v{u[0]}, v{u[1]}\nv_cvt_pk_bf16_f32 v{p+1}, v{u[2]}, v{u[3]}")
        if rt: S.FL(f"ds_write_b128 v{VD}, {vr(p-2,4)} offset:{4096+c*1024}", "zp")
        if q == 0:
            S.FX(lambda: ctx.check(O, CS1, CPOLL, G_PD, 1, "kc0"), 2)
            S.FL(f"ds_read_b128 {vr(CS1,4)}, v2", "cs1")
    S.FX(lambda: pub(3, PDO), 2)
    S.MK("G1")
    S.FX(lambda: O.vm(f"buffer_load_dword v{CTAG}, off, {SDBG}, 0 sc1", "nonce"), 1)
    hooks.get("c_fills0", lambda S, O: None)(S, O)
    E = XF
    EG = "A2_0_1_3_1"
    NMV, RV = E, E + 8
    CV = [1, AD + 4, AD + 5, AD + 6]
    S.FL(f"ds_write_b32 v{CTR}, v{CS} offset:256", "ct", gate=("C1_7_1", 2))
    S.F(f"v_mov_b32 v1, v{CS}")
    S.FX(lambda: puball(1, 12), 2)
    S.MK("CSW1")
    S.F(f"v_lshrrev_b32 v2, 4, v0\nv_lshl_add_u32 v{RTA}, v2, 5, s52")
    for c in range(1, 4):
        S.F(f"v_xor_b32 v{2+(c&1)}, {c*64}, v{CTR}", gate="KC1")
        S.FL(f"ds_read_b32 v{CV[c]}, v{2+(c&1)} offset:256", ("cv", c))
    for k in range(2):
        S.FL(f"ds_read_b128 {vr(NMV+4*k,4)}, v{RTA} offset:{k*16}", ("rv", k), gate=EG)
        S.FL(f"ds_read_b128 {vr(RV+4*k,4)}, v{RTA} offset:{R_R+k*16}", ("rv", k))
    S.FX(lambda: (O.vwait("nonce"), ctx.nonce(O, CTAG)), 2)
    S.FW(("rv", 1))
    for c in range(4):
        a0 = AC(ACC1, c, 0)
        S.F("\n".join(f"v_fma_f32 v{a0+k}, v{NMV+k}, v{CV[c]}, v{a0+k}" for k in range(8)))
        S.F("\n".join(f"v_mul_f32 v{a0+k}, v{a0+k}, v{RV+k}" for k in range(8)))
        S.F("\n".join(f"v_cvt_pk_bf16_f32 v{a0+k}, v{a0+2*k}, v{a0+2*k+1}" for k in range(4)))
        S.FX(lambda a0=a0, c=c: O.vm(f"buffer_store_dwordx4 {vr(a0,4)}, v{GA}, {SWS}, {SO[c]} offen sc1", "abst"), 2)
    S.FX(lambda: O.slabel(".Lc_abst"), 0)
    CSV, NM, R, SD, K0, K1, TM = E + 16, E + 32, E + 34, E + 36, E + 34, E + 38, E + 40
    S.F(f"""
    v_and_b32 v1, 15, v0
    v_and_b32 v2, 12, v0
    v_add_u32 v1, v1, v2
    v_lshl_add_u32 v{RTA}, v1, 2, s52
    v_add_u32 v3, {R_SD & 0xffffffff}, v{RTA}
    v_lshrrev_b32 v2, 5, v0
    v_lshlrev_b32 v{GA}, 15, v2
    v_lshl_add_u32 v{GA}, v1, 4, v{GA}
    v_bfe_u32 v2, v0, 4, 1
    v_lshl_add_u32 v{GA}, v2, 6, v{GA}      ; (G>>1)*32768 + (tok+4(G&1))*16
    """)
    S.FL(f"ds_read2_b32 {vr(R,2)}, v{RTA} offset0:{R_R//4} offset1:{R_R//4+4}", "rt2", gate="A2_2_1_3_1")
    S.FL(f"ds_read2_b32 {vr(NM,2)}, v{RTA} offset0:0 offset1:4", "rt2")
    S.FL(f"ds_read2_b32 {vr(SD,2)}, v3 offset0:0 offset1:4", "rt2")
    S.FW("rt2")
    kk01(R, K0, K1)
    def flag(sreg, tag, lbl):
        O.vwait(tag)
        O("s_mov_b64 exec, 1")
        O.vm(f"buffer_store_dword v{CTAG}, off, {SWS}, {sreg} sc1")
        O("s_mov_b64 exec, -1")
        O.slabel(lbl)
    FP = opt.get("flp", 7)
    if FP < 8: S.FX(lambda: flag("s56", "abst", ".Lc_abfl"), 2, gate=f"A2_{FP-1}_1_3_1")
    S.FL(f"ds_write_b128 v{CTW}, {vr(CS,4)} offset:512", "ct", gate=("C2_7_1", 2))
    S.FX(lambda: puball(2, 16), 2)
    S.MK("CSW2")
    hooks.get("c_fills1", lambda S, O: None)(S, O)
    for c in range(1, 4):
        S.F(f"v_xor_b32 v{2+(c&1)}, {c*64}, v{CTW}", gate="KC2")
        S.FL(f"ds_read_b128 {vr(CSV+4*c,4)}, v{2+(c&1)} offset:512", ("cv2", c))
    for c in range(4):
        a0 = AC(ACC0, c, 0)
        if c: S.FW(("cv2", c))
        for rt in range(2):
            u = [a0 + 4*rt + k for k in range(4)]
            tm = [TM + 4*rt + k for k in range(4)]
            t_ = gelu(u, tm, CSV + 4*c if c else CS, NM+rt, K0+rt, K1+rt, SD+rt)
            t_ += f"v_cvt_pk_bf16_f32 v{a0+2*rt}, v{u[0]}, v{u[1]}\nv_cvt_pk_bf16_f32 v{a0+2*rt+1}, v{u[2]}, v{u[3]}\n"
            S.F(t_, gate=LG(c, rt))
        S.F(f"v_permlane16_swap_b32 v{a0}, v{a0+2}\nv_permlane16_swap_b32 v{a0+1}, v{a0+3}")
        S.FX(lambda a0=a0, c=c: O.vm(f"buffer_store_dwordx4 {vr(a0,4)}, v{GA}, {SWS}, {SZ[c]} offen sc1", "z1st"), 1)
        if FP == 8 + c: S.FX(lambda: flag("s56", "abst", ".Lc_abfl"), 2)
    FB = opt.get("fb", 2)
    S.emit(lambda i, m: m.get("fb", FB), lambda i, m: (18 if m["name"] == "K0" else opt.get("clm", 2)) if m.get("chk") else opt.get("lm", 2), True)
    O.z1flag = lambda: flag("s57", "z1st", ".Lc_z1fl")
    O.slabel(".Lc_p1end")
    return O
```

```python
from gzlib import *
import gz1
from gz1 import HPOLL, HPUB, HC, HT, CPOLL, CPUB, CC, CT_, AX, CTAG
import re

VP, VO, VT = 200, 204, 206
sWB, sK, sSL, sN, sNEED, sLAST, sOB = "s50", "s51", "s63", "s66", "s67", "s68", "s69"
PRE_PC = [10, 11, 12, 13, 14, 15, 15, 15]
PRE_PW = [0, 0, 0, 0, 0, 0, 4, 4]
WO_UNIT = [16, 0, 2, 4, 6, 8, 10]

def ids(sd, tb, fb, sg, opt={}):
    t = ids0(sd, tb, fb, sg)
    if opt.get("sprd"):
        t += f"""
        s_mul_i32 s3, {tb}, {opt['sprd']}
        s_add_u32 {sg}, {sg}, s3
        s_and_b32 {sg}, {sg}, 31
        """
    return t

def ids0(sd, tb, fb, sg):
    if sd == "y":
        return f"""
        s_and_b32 {tb}, s2, 1
        s_lshl_b32 {tb}, {tb}, 3
        s_lshr_b32 s3, s2, 5
        s_add_u32 {tb}, {tb}, s3
        s_bfe_u32 {sg}, s2, {3 | (2 << 16)}
        s_bfe_u32 {fb}, s2, {1 | (1 << 16)}
        s_lshl2_add_u32 {fb}, {fb}, {sg}
        s_lshl_b32 {sg}, {sg}, 3
        """
    return f"""
        s_mov_b32 {tb}, {sRB}
        s_add_u32 {fb}, {sJ}, 8
        s_lshl_b32 {sg}, {sJ}, 2
        """

def install_hooks(ctx, sd, hooks):
    opt = ctx.opt
    def setup(h):
        e = h.e
        e(ids(sd, sWB, sSL, sK, opt))
        if opt.get("norot"): e(f"s_mov_b32 {sK}, 0")
        e(f"""
        s_lshl2_add_u32 {sWB}, {sWB}, {sW}
        s_lshl_b32 {sWB}, {sWB}, 17             ; (tblk*128+32e)*4096
        s_lshl_b32 {sK}, {sK}, 7
        v_lshrrev_b32 v1, 3, v0
        v_and_b32 v2, 7, v0
        v_lshrrev_b32 v3, 4, v0
        v_xor_b32 v3, v2, v3
        v_lshlrev_b32 v3, 4, v3
        v_lshl_add_u32 v{VP}, v1, 12, v3
        v_xor_b32 v{VP+1}, 64, v{VP}
        v_add_u32 v{VP+2}, {16*4096-2048}, v{VP}
        v_add_u32 v{VP+3}, {24*4096-3072}, v{VP+1}
        v_add_u32 v{VP+1}, {8*4096-1024}, v{VP+1}
        v_bfe_u32 v3, v0, 4, 1
        v_lshlrev_b32 v3, 2, v3
        v_xor_b32 v2, v2, v3
        v_lshlrev_b32 v2, 4, v2
        v_lshl_add_u32 v{VO}, v1, 10, v2
        v_add_u32 v{VO+1}, {8*1024-1024}, v{VO}
        s_lshl_b32 {sOB}, {sW}, 14
        s_lshl_b32 s3, {sJ}, 7
        s_add_u32 {sOB}, {sOB}, s3              ; 16e*1024 + d64*128
        v_lshlrev_b32 v{VT}, 7, v0
        """)
        h.npre = 0
    def pre(h, upto):
        e = h.e
        while h.npre < upto:
            n = h.npre; h.npre += 1
            if n == 0 or PRE_PC[n] != PRE_PC[n-1]: h.wait(G_PC, PRE_PC[n])
            if n and PRE_PW[n] != PRE_PW[n-1]: h.wait(G_PW, PRE_PW[n])
            dma_p(h, slot_of(n)*16384, ("p", n))
    pl = opt.get("pl", 30)
    a, b, c_ = pl // 1000, pl // 100 % 10, pl // 10 % 10
    old = hooks.get("h_setup", lambda h: None)
    hooks["h_setup"] = lambda h: (old(h), setup(h))
    hooks["h_prepoll"] = lambda h: pre(h, a)
    hooks["h_postpoll"] = lambda h: pre(h, b)
    hooks["h_preflag"] = lambda h: pre(h, c_)
    ctx.pre = pre

def dma_p(h, slot, tag=None):
    e = h.e
    e(f"s_add_u32 m0, s49, {slot}")
    e(f"s_add_u32 s3, {sWB}, {sK}")
    for q in range(4):
        e.vm(f"buffer_load_dwordx4 v{VP+q}, {SWP}, s3 offen{' offset:%d' % (q*1024) if q else ''} lds" if not (h.ctx.opt.get("p2nw") and tag is None) else "s_nop 0", tag)
    e(f"s_add_u32 {sK}, {sK}, {0 if h.ctx.opt.get('p2wk') and tag is None else 128}")
    e(f"s_and_b32 {sK}, {sK}, 4095")
    if tag: h.thr[tag] = e.nvm

def p2_helper(ctx, sd, h):
    e = h.e; opt = ctx.opt
    ctx.pre(h, 8)
    N0 = e.nvm; h.thr["N0"] = N0
    e.lwaitall()
    e(f"""
    s_mov_b32 {sN}, {N0}
    s_mov_b32 {sNEED}, 17
    s_mov_b32 {sSL}, {slot_of(8)*16384}
    s_mov_b32 {sLAST}, -1
    """)
    if sd == "g":
        e(f"""
        s_cmp_lt_u32 {sJ}, 7
        s_cbranch_scc1 .Lh2_loop_@S
        s_waitcnt vmcnt(0)
        s_branch .Lh2_done_@S
        """)
    tp = ctx.trypub(sN, HPUB, HT)
    e(f"""
    .Lh2_loop_@S:
    ds_read_b32 v{HC}, v{HPOLL} offset:{G_PC}
    """)
    e("\n".join(tp[:5]))
    e(f"""
    s_cmp_eq_u32 s3, {sLAST}
    s_cbranch_scc1 .Lh2_np_@S
    s_mov_b32 {sLAST}, s3
    {tp[5]}
    {tp[6]}
    .Lh2_np_@S:
    s_waitcnt lgkmcnt(0)
    v_cmp_gt_u32 vcc, {sNEED}, v{HC}
    s_cbranch_vccz .Lh2_go_@S
    s_cmp_eq_u32 {sBUD}, 0
    s_cbranch_scc1 .Lh2_go_@S
    s_sub_u32 {sBUD}, {sBUD}, 1
    s_sleep {opt.get('hs2', 1)}
    s_branch .Lh2_loop_@S
    .Lh2_go_@S:
    """)
    dma_p(h, sSL)
    e(f"""
    s_add_u32 {sSL}, {sSL}, 16384
    s_and_b32 {sSL}, {sSL}, {8*16384-1}
    s_add_u32 {sN}, {sN}, 4
    s_add_u32 {sNEED}, {sNEED}, 1
    s_cmp_lt_u32 {sNEED}, {17+24}
    s_cbranch_scc1 .Lh2_loop_@S
    .Lh2_done_@S:
    """)
    e.nvm = N0 + 96
    if opt.get("stop", 3) >= 3:
        e(f"""
        s_lshr_b32 s3, s2, 3
        s_lshl2_add_u32 s3, s3, {sW}
        s_min_u32 s3, s3, 111
        s_lshl_b32 s3, s3, 13
        """)
        e.vm(f"buffer_load_dword v{VT+1}, v{VT}, {SWO}, s3 offen")
        for j in range(7):
            h.wait(G_PC, 16 + 24 + j if j else 16)
            for kh in range(2):
                e(f"s_add_u32 m0, s48, {(WO_UNIT[j]+kh)*8192}")
                e(f"s_add_u32 s3, {sOB}, {(7*kh+j)*65536}")
                e.vm(f"buffer_load_dwordx4 v{VO}, {SWO}, s3 offen lds")
                e.vm(f"buffer_load_dwordx4 v{VO+1}, {SWO}, s3 offen offset:1024 lds")
            h.trypub()
        h.thr["wo"] = e.nvm
    tp = ctx.trypub(e.nvm, HPUB, HT)
    e(".Lh2_dr_@S:")
    e("\n".join(tp))
    e(f"""
    s_cmp_eq_u32 s3, {e.nvm}
    s_cbranch_scc1 .Lh2_end_@S
    s_sleep 1
    s_branch .Lh2_dr_@S
    .Lh2_end_@S:
    s_waitcnt vmcnt(0) lgkmcnt(0)
    """)
    e.slabel(".Lh_p2end")

AX2, VA, VS, VF, VB, VFR = 16, 20, 24, 25, 26, 30
BF, ACC, AF = 32, 64, 128
sTB, sFB, sKA, sAB, sT, sIT, sO0, sO1, sFL, sGF = "s48", "s49", "s50", "s51", "s52", "s53", "s58", "s59", "s60", "s61"
sA = "s56"
LA = 8

def p2_compute(ctx, sd, O, h):
    opt = ctx.opt
    Y = sd == "y"
    N0 = h.thr["N0"]
    O(ids(sd, sTB, sFB, sKA, opt))
    if opt.get("norot"): O(f"s_mov_b32 {sKA}, 0")
    O(f"""
    s_lshl_b32 {sFL}, {sFB}, 1
    s_lshr_b32 s3, {sW}, 1
    s_add_u32 {sFL}, {sFL}, s3
    s_lshl_b32 {sFL}, {sFL}, 8
    s_add_u32 {sFL}, {sFL}, {WS_F}
    v_lshlrev_b32 v{VF}, 2, v0
    """)
    if not Y:
        O(f"""
        s_cmp_eq_u32 {sJ}, 7
        s_cbranch_scc1 .Lc2_skip
        """)
    O.vm(f"buffer_load_dword v31, v{VF}, {SWS}, {sFL} offen sc1", "fl")
    O(PERM.format(d=1, t=2))
    if not Y:
        O(f"""
        v_lshlrev_b32 v3, 1, v1
        s_lshl_b32 s3, {sTB}, 8
        """)
        for T in range(4): O.vm(f"buffer_load_ushort v{VB+T}, v3, {SBSP}, s3 offen offset:{T*64}", "bias")
    O(f"""
    v_lshrrev_b32 v2, 5, v0
    v_lshlrev_b32 v{VS}, 15, v2
    v_lshl_add_u32 v{VS}, v1, 4, v{VS}
    v_mul_u32_u24 v{VA}, {XP}, v2
    v_lshl_add_u32 v{VA}, v1, 4, v{VA}
    v_add_u32 v{VA+1}, {2*XP}, v{VA}
    v_add_u32 v{VA+2}, {4*XP}, v{VA}
    v_add_u32 v{VA+3}, {6*XP}, v{VA}
    s_lshl2_add_u32 s3, {sFB}, {sW}             ; 4fb+w
    s_lshl_b32 {sAB}, s3, 9                     ; f0*16
    s_mul_i32 {sKA}, {sKA}, {8*XP}
    s_lshl_b32 {sO0}, s3, 17
    s_lshl_b32 {sGF}, s3, 2
    s_lshl_b32 s3, {sTB}, 11
    s_add_u32 {sO0}, {sO0}, s3
    s_add_u32 {sO0}, {sO0}, {WS_Y1}
    s_add_u32 {sO1}, {sO0}, 65536
    s_lshl_b32 s3, {sTB}, 8
    s_add_u32 {sGF}, {sGF}, s3
    s_add_u32 {sGF}, {sGF}, {WS_G + (128 if Y else -128)}
    s_mov_b32 {sT}, {N0 - 28}
    s_mov_b32 {sIT}, 3
    v_mov_b32 v{VFR}, 16
    """)
    for k in range(4):
        b = O.ax[k].base
        if b: O(f"v_subrev_u32 v{AX+k}, {b}, v{AX+k}")
        O(f"v_add_u32 v{AX2+k}, 65536, v{AX+k}")
    if Y:
        for r in range(64): O(f"v_mov_b32 v{ACC+r}, 0")
    else:
        O.vwait("bias")
        for T in range(4): O(f"v_lshlrev_b32 v{VB+T}, 16, v{VB+T}")
        for r in range(64): O(f"v_mov_b32 v{ACC+r}, v{VB+r//16}")
    O(f"""
    s_waitcnt vmcnt(0)
    v_cmp_ne_u32 vcc, {sNONCE}, v31
    s_cbranch_vccnz .Lc2_fl_@S
    .Lc2_go_@S:
    """)
    ctx.ool += f""".Lc2_fl_{sd}:
        buffer_load_dword v31, v{VF}, {SWS}, {sFL} offen sc1
        s_cmp_eq_u32 {sBUD}, 0
        s_waitcnt vmcnt(0)
        s_cbranch_scc1 .Lc2_go_{sd}
        s_sub_u32 {sBUD}, {sBUD}, 16
        s_max_i32 {sBUD}, {sBUD}, 0
        v_cmp_ne_u32 vcc, {sNONCE}, v31
        s_cbranch_vccnz .Lc2_fl_{sd}
        s_branch .Lc2_go_{sd}""".split("\n")
    O.slabel(".Lc_p2go")
    def nextk():
        O(f"""
        s_add_u32 {sA}, {sAB}, {sKA}
        s_add_u32 {sKA}, {sKA}, {8*XP}
        s_cmp_eq_u32 {sKA}, {256*XP}
        s_cselect_b32 {sKA}, 0, {sKA}
        """)
    def lda(n, ks):
        if ks == 0: nextk()
        r = AF + ((n & 7)*4 + ks)*4
        O.vm(f"buffer_load_dwordx4 {vr(r,4)}, v{VA+ks}, {SWS}, {sA} offen sc1" if not (opt.get("p2na") and n >= 8) else "s_nop 0", ("a", n, ks))
    items = []
    for n in range(30):
        for ks in range(4):
            for T in range(4): items.append((n, ks, T))
    for T in range(4):
        for n in (30, 31):
            for ks in range(4): items.append((n, ks, T))
    NI = len(items)
    first = {}; last = {}; lastA = {}; firstA = {}; lastT = {}
    for j, (n, ks, T) in enumerate(items):
        first.setdefault(n, j); last[n] = j; lastA[(n, ks)] = j; firstA.setdefault((n, ks), j); lastT[T] = j
    def rdb(j):
        n, ks, T = items[j]
        s = slot_of(n)
        reg = (AX if s < 4 else AX2) + ks
        O.lds(f"ds_read_b128 {vr(BF+(j&7)*4,4)}, v{reg} offset:{(s&3)*16384 + T*4096}", ("b", j))
        if j == last[n] and not (n == 30):
            O(f"v_add_u32 v{VFR}, {2 if n == 31 else 1}, v{VFR}")
            O.lds(f"ds_write_b32 v{CPUB}, v{VFR}", "pub")
    def prerd(n): O.lds(f"ds_read_b32 v{CC}, v{CPOLL} offset:{G_SEQ}", ("pc", n))
    def chk(n):
        ctx.check(O, CC, CPOLL, G_SEQ, sT, ("pc", n))
        O(f"s_add_u32 {sT}, {sT}, 4")
    PDIST = opt.get("p2pd", 3)
    chkpos = {first[n] - LA: n for n in range(32)}
    prepos = {first[n] - LA - PDIST: n for n in range(32)}
    fills = []
    def ZR(T, b): return AF + (T*2 + b)*4
    for T in range(4):
        g = lastT[T] + 2
        for b in range(2):
            a0 = ACC + 16*T + 8*b
            if Y:
                for k in range(4): fills.append((g, 1, f"v_cvt_pk_bf16_f32 v{a0+k}, v{a0+2*k}, v{a0+2*k+1}"))
            else:
                fills.append((g, 0, lambda T=T, b=b: O.vwait(("z", T, b))))
                for k in range(4):
                    t = 2 if k & 1 else 8
                    z = ZR(T, b) + k
                    fills.append((g, 1, f"v_lshlrev_b32 v{t}, 16, v{z}"))
                    fills.append((g, 1, f"v_and_b32 v{t+1}, 0xffff0000, v{z}"))
                    fills.append((g, 2, f"v_pk_mul_f32 {vr(a0+2*k,2)}, {vr(a0+2*k,2)}, {vr(t,2)}"))
                    fills.append((g, 1, f"v_cvt_pk_bf16_f32 v{a0+k}, v{a0+2*k}, v{a0+2*k+1}"))
            fills.append((g, 2, lambda a0=a0, T=T, b=b: O.vm(f"buffer_store_dwordx4 {vr(a0,4)}, v{VS}, {SWS}, {sO1 if b else sO0} offen offset:{T*512} sc1")))
    prerd(0)
    for n in range(2):
        for ks in range(4): lda(n, ks)
    chk(0)
    O.slabel(".Lc_p2full0")
    for j in range(LA):
        rdb(j)
    for n in range(2, 8):
        for ks in range(4): lda(n, ks)
    marks = []
    fi = 0
    for j, (n, ks, T) in enumerate(items):
        if j % 128 == 0: marks.append(len(O.o))
        if firstA[(n, ks)] == j: O.vwait(("a", n, ks))
        O.lwait(("b", j))
        O(MF(ACC + 16*T, AF + ((n & 7)*4 + ks)*4, BF + (j & 7)*4, False))
        if j in prepos: prerd(prepos[j])
        if j in chkpos: chk(chkpos[j])
        if j + LA < NI: rdb(j + LA)
        if lastA[(n, ks)] == j:
            if n + 8 < 32: lda(n + 8, ks)
            elif not Y and n in (24, 25):
                T_, b_ = ((n - 24)*4 + ks) >> 1, ks & 1
                if n == 24 and ks == 0:
                    O(f"s_add_u32 {sA}, {sO0}, {WS_Z1 - WS_U}")
                    O(f"s_add_u32 {sAB}, {sO1}, {WS_Z1 - WS_U}")
                O.vm(f"buffer_load_dwordx4 {vr(ZR(T_, b_),4)}, v{VS}, {SWS}, {sAB if b_ else sA} offen offset:{T_*512} sc1", ("z", T_, b_))
        bud = opt.get("p2fb", 6)
        while fi < len(fills) and fills[fi][0] <= j and bud >= fills[fi][1]:
            f = fills[fi]; bud -= f[1]; fi += 1
            if callable(f[2]): f[2]()
            else: O(f[2])
    O.slabel(".Lc2_mmend")
    while fi < len(fills):
        f = fills[fi]; fi += 1
        if callable(f[2]): f[2]()
        else: O(f[2])
    its = [O.o[marks[k]:marks[k+1]] for k in range(3)]
    norm = lambda L: [re.sub(r"\.L(sp|rt)_\d+", r".L\1", x) for x in L]
    assert norm(its[1]) == norm(its[2])
    if norm(its[0]) != norm(its[1]):
        for a, b in zip(norm(its[0]), norm(its[1])):
            if a != b: print("IT0 diff:", a, "|", b)
        assert all((a == b or a.startswith("s_waitcnt")) for a, b in zip(norm(its[0]), norm(its[1]))) and len(its[0]) == len(its[1])
    tail = [f"s_sub_u32 {sIT}, {sIT}, 1", f"s_cmp_lg_u32 {sIT}, 0", f"s_cbranch_scc1 .Lc2_loop_{sd}"]
    body = its[1]
    f1, n1 = hazfix.fix(body + tail); f2, n2 = hazfix.fix(body + tail + body + tail)
    assert n2 == 2*n1, (n1, n2)
    dead = set()
    for k in (0, 2):
        for x in its[k]:
            m = re.match(r"s_cbranch_vccnz (\.Lsp_\d+)", x)
            if m: dead.add(m.group(1))
    ool = []; skip = False
    for x in ctx.ool:
        x = x.strip()
        if x.endswith(":"): skip = x[:-1] in dead
        if not skip: ool.append(x)
    ctx.ool = ool
    O.o[marks[0]:marks[3]] = [f".Lc2_loop_{sd}:"] + body + tail + [f".Lc2_last_{sd}:"]
    O(f"""
    s_waitcnt vmcnt(0)
    s_mov_b64 exec, 1
    buffer_store_dword v{CTAG}, off, {SWS}, {sGF} sc1
    s_mov_b64 exec, -1
    """)
    O.lwaitall()
    if not Y:
        O(".Lc2_join:")
        ctx.ool += f""".Lc2_skip:
        ds_read_b32 v{CC}, v{CPOLL} offset:{G_SEQ}
        s_cmp_eq_u32 {sBUD}, 0
        s_waitcnt lgkmcnt(0)
        s_cbranch_scc1 .Lc2_skip2
        s_sub_u32 {sBUD}, {sBUD}, 1
        v_cmp_gt_u32 vcc, {N0}, v{CC}
        s_sleep 2
        s_cbranch_vccnz .Lc2_skip
        .Lc2_skip2:
        v_mov_b32 v{VFR}, 48
        ds_write_b32 v{CPUB}, v{VFR}
        s_waitcnt vmcnt(0) lgkmcnt(0)
        s_branch .Lc2_join""".split("\n")
    O.lq = []; O.nvm = 0; O.vtag = {}
    O.slabel(".Lc_p2end")


def M16(acc, a, b): return f"v_mfma_f32_16x16x32_bf16 {vr(acc,4)}, {vr(a,4)}, {vr(b,4)}, {vr(acc,4)}"

def p2_compute16(ctx, sd, O, h):
    opt = ctx.opt
    Y = sd == "y"
    N0 = h.thr["N0"]
    SC = "" if opt.get("nosc", 0) & 1 else " sc1"
    BX, VA, VS, VF, VFR = 4, 20, 24, 25, 30
    VB = BF
    O(ids(sd, sTB, sFB, sKA, opt))
    if opt.get("norot"): O(f"s_mov_b32 {sKA}, 0")
    O(f"""
    s_lshl_b32 {sFL}, {sFB}, 1
    s_lshr_b32 s3, {sW}, 1
    s_add_u32 {sFL}, {sFL}, s3
    s_lshl_b32 {sFL}, {sFL}, 8
    s_add_u32 {sFL}, {sFL}, {WS_F}
    v_lshlrev_b32 v{VF}, 2, v0
    """)
    if not Y:
        O(f"""
        s_cmp_eq_u32 {sJ}, 7
        s_cbranch_scc1 .Lc2_skip
        """)
    O.vm(f"buffer_load_dword v31, v{VF}, {SWS}, {sFL} offen sc1", "fl")
    O(f"""
    v_and_b32 v1, 15, v0
    v_lshrrev_b32 v2, 4, v0
    """)
    if not Y:
        O(f"""
        v_lshlrev_b32 v3, 1, v1
        s_lshl_b32 s3, {sTB}, 8
        """)
        for nt in range(8): O.vm(f"buffer_load_ushort v{VB+nt}, v3, {SBSP}, s3 offen offset:{nt*32}", "bias")
    O(f"""
    v_lshlrev_b32 v{VS}, 15, v2
    v_lshl_add_u32 v{VS}, v1, 4, v{VS}
    v_mul_u32_u24 v{VA}, {XP}, v2
    v_lshl_add_u32 v{VA}, v1, 4, v{VA}
    v_add_u32 v{VA+1}, {4*XP}, v{VA}
    v_lshrrev_b32 v3, 1, v1
    v_xor_b32 v3, v3, v2
    v_lshlrev_b32 v3, 4, v3
    v_lshl_add_u32 v{BX}, v1, 7, v3
    v_xor_b32 v{BX+1}, 64, v{BX}
    v_add_u32 v{BX+2}, 65536, v{BX}
    v_add_u32 v{BX+3}, 65536, v{BX+1}
    s_lshl2_add_u32 s3, {sFB}, {sW}             ; 4fb+w
    s_lshl_b32 {sAB}, s3, 9                     ; f0*16
    s_mul_i32 {sKA}, {sKA}, {8*XP}
    s_lshl_b32 {sO0}, s3, 17
    s_lshl_b32 {sGF}, s3, 2
    s_lshl_b32 s3, {sTB}, 11
    s_add_u32 {sO0}, {sO0}, s3
    s_add_u32 {sO0}, {sO0}, {WS_Y1}
    s_add_u32 {sO1}, {sO0}, {WS_Z1 - WS_U}
    s_lshl_b32 s3, {sTB}, 8
    s_add_u32 {sGF}, {sGF}, s3
    s_add_u32 {sGF}, {sGF}, {WS_G + (128 if Y else -128)}
    s_mov_b32 {sT}, {N0 - 28}
    s_mov_b32 {sIT}, 3
    v_mov_b32 v{VFR}, 16
    """)
    if Y:
        for r in range(64): O(f"v_mov_b32 v{ACC+r}, 0")
    else:
        O.vwait("bias")
        for r in range(64): O(f"v_lshlrev_b32 v{ACC+r}, 16, v{VB+r//8}")
    O.z1flag()
    O(f"""
    s_waitcnt vmcnt(1)
    v_cmp_ne_u32 vcc, {sNONCE}, v31
    s_cbranch_vccnz .Lc2_fl_@S
    .Lc2_go_@S:
    """)
    ctx.ool += f""".Lc2_fl_{sd}:
        s_sleep {opt.get("slp2", 0)}
        buffer_load_dword v31, v{VF}, {SWS}, {sFL} offen sc1
        s_cmp_eq_u32 {sBUD}, 0
        s_waitcnt vmcnt(0)
        s_cbranch_scc1 .Lc2_go_{sd}
        s_sub_u32 {sBUD}, {sBUD}, 16
        s_max_i32 {sBUD}, {sBUD}, 0
        v_cmp_ne_u32 vcc, {sNONCE}, v31
        s_cbranch_vccnz .Lc2_fl_{sd}
        s_branch .Lc2_go_{sd}""".split("\n")
    O.slabel(".Lc_p2go")
    def nextk(n):
        O(f"s_add_u32 {sA}, {sA}, {0 if opt.get('p2ak') and n >= 8 else 8*XP}")
        if n % 4 == 0 or opt.get('sprd', 0) % 4:
            O(f"s_cmp_eq_u32 {sA}, {sKA}")
            O(f"s_cselect_b32 {sA}, {sAB}, {sA}")
    def AR(n, kk, mt): return AF + ((n & 7)*4 + kk*2 + mt)*4
    def lda(n, kk, mt):
        O.vm(f"buffer_load_dwordx4 {vr(AR(n,kk,mt),4)}, v{VA+kk}, {SWS}, {sA} offen{' offset:256' if mt else ''}{SC}" if not (opt.get("p2na") and 2*n + kk >= 15) else "s_nop 0", ("a", n, kk, mt))
    NM_ = opt.get("p2merge", 2)
    items = []
    for n in range(32 - NM_):
        for kk in range(2):
            for nt in range(8): items.append((n, kk, nt))
    for nt in range(8):
        for n in range(32 - NM_, 32):
            for kk in range(2): items.append((n, kk, nt))
    NI = len(items)
    first = {}; last = {}; lastA = {}; firstA = {}; lastT = {}
    for j, (n, kk, nt) in enumerate(items):
        first.setdefault(n, j); last[n] = j; lastA[(n, kk)] = j; firstA.setdefault((n, kk), j); lastT[nt] = j
    def rdb(j):
        n, kk, nt = items[j]
        s = slot_of(n)
        reg = BX + (0 if s < 4 else 2) + kk
        O.lds(f"ds_read_b128 {vr(BF+(j&7)*4,4)}, v{reg} offset:{(s&3)*16384 + nt*2048}", ("b", j))
    def prerd(n): O.lds(f"ds_read_b32 v{CC}, v{CPOLL} offset:{G_SEQ}", ("pc", n))
    def chk(n): ctx.check(O, CC, CPOLL, G_SEQ, sT, ("pc", n))
    PDIST = opt.get("p2pd", 5)
    ex = {}
    pw = {}
    def EX(j, fn): ex.setdefault(j, []).append(fn)
    def zld(nt_): O.vm(f"buffer_load_dwordx4 {vr(ZR(nt_),4)}, v{VS}, {SWS}, {sO1} offen offset:{nt_*256}{SC}", ("z", nt_))
    def zfl():
        O(f"""
        s_lshl_b32 s3, {sTB}, 4
        s_add_u32 {sFL}, {sFL}, s3
        v_and_b32 v{VF}, 12, v{VF}
        """)
        O.vm(f"buffer_load_dword v31, v{VF}, {SWS}, {sFL} offen offset:{14*256} sc1", "zf")
    def zchk():
        O.vwait("zf")
        O(f"""
        v_cmp_ne_u32 vcc, {sNONCE}, v31
        s_cbranch_vccnz .Lc2_zf
        .Lc2_zgo:
        """)
        ctx.ool += f""".Lc2_zf:
        buffer_load_dword v31, v{VF}, {SWS}, {sFL} offen offset:{14*256} sc1
        s_cmp_eq_u32 {sBUD}, 0
        s_waitcnt vmcnt(0)
        s_cbranch_scc1 .Lc2_zgo
        s_sub_u32 {sBUD}, {sBUD}, 16
        s_max_i32 {sBUD}, {sBUD}, 0
        v_cmp_ne_u32 vcc, {sNONCE}, v31
        s_cbranch_vccnz .Lc2_zf
        s_branch .Lc2_zgo""".split("\n")
    if not Y: EX(first[24] + 6, zfl)
    for n in range(32):
        if 0 < n <= 32 - NM_:
            cp = first[n] - LA
            EX(cp - PDIST, lambda n=n: prerd(n))
            pw[cp] = ("pc", n)
            EX(cp, lambda n=n: chk(n))
            EX(cp - 2, lambda n=n: O(f"s_add_u32 {sT}, {sT}, {4*NM_ if n == 32 - NM_ else 4}"))
        if not (32 - NM_ <= n < 31):
            lp = last[n] - LA
            EX(lp - 1, lambda n=n: O(f"v_add_u32 v{VFR}, {NM_ if n == 31 else 1}, v{VFR}"))
            EX(lp + 2, lambda: O.lds(f"ds_write_b32 v{CPUB}, v{VFR}", "pub"))
        for kk in range(2):
            for mt in range(2):
                p = lastA[(n, kk)] + 1 + mt + (2 if kk == 0 else 0)
                if n + 8 < 32: EX(p, lambda n=n, kk=kk, mt=mt: lda(n + 8, kk, mt))
                elif not Y and n in (26, 27):
                    if (n, kk, mt) == (26, 0, 0): EX(p, zchk)
                    EX(p, lambda n=n, kk=kk, mt=mt: zld((n - 26)*4 + kk*2 + mt))
        if n + 8 < 32: EX(first[n] + 4, lambda n=n: nextk(n + 8))
    fills = []
    def ZR(nt): return AF + nt*4
    for nt in range(8):
        g = lastT[nt] + 2
        a0 = ACC + 8*nt
        if Y:
            for k in range(4): fills.append((g, 1, f"v_cvt_pk_bf16_f32 v{a0+k}, v{a0+2*k}, v{a0+2*k+1}"))
        else:
            fills.append((g, 0, lambda nt=nt: O.vwait(("z", nt))))
            for k in range(4):
                t = 2 if k & 1 else 8
                z = ZR(nt) + k
                fills.append((g, 1, f"v_lshlrev_b32 v{t}, 16, v{z}"))
                fills.append((g, 1, f"v_and_b32 v{t+1}, 0xffff0000, v{z}"))
                fills.append((g, 1, f"v_mul_f32 v{a0+2*k}, v{a0+2*k}, v{t}"))
                fills.append((g, 1, f"v_mul_f32 v{a0+2*k+1}, v{a0+2*k+1}, v{t+1}"))
                fills.append((g, 1, f"v_cvt_pk_bf16_f32 v{a0+k}, v{a0+2*k}, v{a0+2*k+1}"))
        fills.append((g, 1, lambda a0=a0, nt=nt: O.vm(f"buffer_store_dwordx4 {vr(a0,4)}, v{VS}, {SWS}, {sO0} offen offset:{nt*256} sc1")))
    O(f"""
    s_add_u32 {sA}, {sAB}, {sKA}
    s_add_u32 {sKA}, {sAB}, {256*XP}
    """)
    prerd(0)
    for n in range(8):
        if n: nextk(n)
        for q in range(4):
            if not (n == 7 and q >= 2): lda(n, q >> 1, q & 1)
        if n == 1:
            chk(0)
            O.slabel(".Lc_p2full0")
            for j in range(LA): rdb(j)
    EX(0, lambda: lda(7, 1, 0)); EX(1, lambda: lda(7, 1, 1))
    marks = []
    fi = [0]
    def dofills(j, bud):
        while fi[0] < len(fills) and fills[fi[0]][0] <= j and bud >= fills[fi[0]][1]:
            f = fills[fi[0]]; bud -= f[1]; fi[0] += 1
            if callable(f[2]): f[2]()
            else: O(f[2])
    FB = opt.get("p2fb", 2)
    WG = opt.get("p2wg", 2)
    AL = opt.get("p2al", 0)
    for j, (n, kk, nt) in enumerate(items):
        if j % 128 == 0: marks.append(len(O.o)); O("; it")
        if firstA[(n, kk)] == j: O.vwait(("a", n, kk, 1))
        if j in pw: O.lwait(pw[j])
        if j % WG == 0: O.lwait(("b", min(j + WG - 1, NI - 1)))
        if AL: O(".p2align 3")
        O(M16(ACC + 8*nt, AR(n, kk, 0), BF + (j & 7)*4))
        for fn in ex.get(j, []): fn()
        dofills(j, FB)
        if AL: O(".p2align 3")
        O(M16(ACC + 8*nt + 4, AR(n, kk, 1), BF + (j & 7)*4))
        if j + LA < NI: rdb(j + LA)
        dofills(j, FB - 1)
    O.slabel(".Lc2_mmend")
    dofills(10**9, 10**9)
    roll(ctx, sd, O, marks)
    p2_tail(ctx, sd, O, N0, VFR)

def roll(ctx, sd, O, marks):
    its = [O.o[marks[k]:marks[k+1]] for k in range(3)]
    norm = lambda L: [re.sub(r"\.L(sp|rt)_\d+", r".L\1", x) for x in L]
    assert norm(its[1]) == norm(its[2])
    assert len(its[0]) == len(its[1])
    body = list(its[1])
    for k, (a, b) in enumerate(zip(norm(its[0]), norm(its[1]))):
        if a != b:
            assert a.startswith("s_waitcnt") and b.startswith("s_waitcnt"), (a, b)
            d = {}
            for p in a.split()[1:] + b.split()[1:]:
                nm, v = p[:-1].split("("); d[nm] = min(d.get(nm, 99), int(v))
            body[k] = "s_waitcnt " + " ".join(f"{x}({d[x]})" for x in sorted(d, reverse=True))
    tail = [f"s_sub_u32 {sIT}, {sIT}, 1", f"s_cmp_lg_u32 {sIT}, 0", f"s_cbranch_scc1 .Lc2_loop_{sd}"]
    mi = [k for k, x in enumerate(body) if x.startswith("v_mfma")]
    body[mi[-3]:mi[-3]] = tail[:2]; tail = tail[2:]
    assert not any(x.startswith(("s_add", "s_cmp", "s_sub", "s_and", "s_lshl")) for x in body[mi[-3]+2:])
    f1, n1 = hazfix.fix(body + tail); f2, n2 = hazfix.fix(body + tail + body + tail)
    assert n2 == 2*n1, (n1, n2)
    dead = set()
    for k in (0, 2):
        for x in its[k]:
            m = re.match(r"s_cbranch_vccnz (\.Lsp_\d+)", x)
            if m: dead.add(m.group(1))
    ool = []; skip = False
    for x in ctx.ool:
        x = x.strip()
        if x.endswith(":"): skip = x[:-1] in dead
        if not skip: ool.append(x)
    ctx.ool = ool
    O.o[marks[0]:marks[3]] = [f".Lc2_loop_{sd}:"] + body + tail + [f".Lc2_last_{sd}:"]

def p2_tail(ctx, sd, O, N0, VFR):
    O(f"""
    s_waitcnt vmcnt(0)
    s_mov_b64 exec, 1
    buffer_store_dword v{CTAG}, off, {SWS}, {sGF} sc1
    s_mov_b64 exec, -1
    """)
    O.lwaitall()
    if sd == "g":
        O(".Lc2_join:")
        ctx.ool += f""".Lc2_skip:
        ds_read_b32 v{CC}, v{CPOLL} offset:{G_SEQ}
        s_cmp_eq_u32 {sBUD}, 0
        s_waitcnt lgkmcnt(0)
        s_cbranch_scc1 .Lc2_skip2
        s_sub_u32 {sBUD}, {sBUD}, 1
        v_cmp_gt_u32 vcc, {N0}, v{CC}
        s_sleep 2
        s_cbranch_vccnz .Lc2_skip
        .Lc2_skip2:
        v_mov_b32 v{VFR}, 48
        ds_write_b32 v{CPUB}, v{VFR}
        s_waitcnt vmcnt(0) lgkmcnt(0)
        s_branch .Lc2_join""".split("\n")
    O.lq = []; O.nvm = 0; O.vtag = {}
    O.slabel(".Lc_p2end")
```

```python
from gzlib import *
from gz1 import CPOLL, CPUB, CC, CT_, CTAG
from gz2 import WO_UNIT

AWA, AWB, VU, VX_, VF, VE, VPD = 4, 5, 6, 7, 25, 16, 17
BF, ACA, ACB, UF = 32, 64, 80, 128
XR, Y1R, Y2R, PR = 96, 104, 112, 240
sT0, sU, sXO, sY, sG, sKH = "s48", "s49", "s50", "s51", "s52", "s53"

def p3_compute(ctx, sd, O, h):
    opt = ctx.opt
    Y = sd == "y"
    SC = "" if opt.get("nosc", 0) & 2 else " sc1"
    O(f"""
    s_and_b32 {sT0}, s2, 3
    s_lshl_b32 {sT0}, {sT0}, 3
    s_lshr_b32 s3, s2, 6
    s_add_u32 {sT0}, {sT0}, s3
    s_add_u32 {sT0}, {sT0}, {0 if Y else 4}     ; t64
    s_lshr_b32 {sG}, {sT0}, 1
    s_lshl_b32 {sG}, {sG}, 8
    s_add_u32 {sG}, {sG}, {WS_G}
    v_lshlrev_b32 v{VF}, 2, v0
    """)
    O.vm(f"buffer_load_dword v31, v{VF}, {SWS}, {sG} offen sc1", "fl")
    O(f"""
    s_lshr_b32 {sKH}, {sW}, 1
    s_and_b32 s3, {sW}, 1
    s_lshl1_add_u32 {sT0}, {sT0}, s3            ; t0/32
    v_and_b32 v1, 31, v0
    v_lshrrev_b32 v2, 5, v0
    v_lshlrev_b32 v{VX_}, 4, v2
    v_lshl_add_u32 v{VX_}, v1, 10, v{VX_}
    s_lshl_b32 {sXO}, {sT0}, 15
    s_lshl1_add_u32 s3, {sJ}, {sKH}             ; 2*d64+kh
    s_lshl_b32 {sY}, s3, 17
    s_lshl_b32 s3, s3, 6
    s_add_u32 {sXO}, {sXO}, s3
    """)
    for b in range(2): O.vm(f"buffer_load_dwordx4 {vr(XR+4*b,4)}, v{VX_}, {SX}, {sXO} offen offset:{b*32}", "x")
    O(f"""
    v_lshlrev_b32 v{VU}, 15, v2
    v_lshl_add_u32 v{VU}, v1, 4, v{VU}
    s_lshl_b32 {sT0}, {sT0}, 9                  ; t0*16
    s_mul_i32 {sU}, {sKH}, {56*32768}
    s_add_u32 {sU}, {sU}, {sT0}
    s_add_u32 {sU}, {sU}, {WS_U}
    s_add_u32 {sY}, {sY}, {sT0}
    s_add_u32 {sY}, {sY}, {WS_Y1}
    v_bfe_u32 v3, v0, 2, 2
    v_lshl_add_u32 v3, v2, 3, v3
    v_lshlrev_b32 v3, 7, v3
    v_bfe_u32 v1, v0, 4, 1
    v_bfe_u32 v2, v0, 3, 1
    v_lshl_add_u32 v1, v2, 1, v1
    v_lshl_add_u32 v3, v1, 5, v3
    v_and_b32 v1, 1, v0
    v_lshl_add_u32 v3, v1, 4, v3
    v_bfe_u32 v1, v0, 1, 1
    v_lshl_add_u32 v3, v1, 3, v3
    s_mul_i32 s3, {sKH}, {8192+64}
    v_xor_b32 v{AWA}, s3, v3
    v_xor_b32 v{AWB}, 64, v{AWA}
    s_lshl_b32 s3, {sW}, 12
    s_add_u32 s3, s3, {EXCH}
    v_lshl_add_u32 v{VE}, v0, 4, s3
    s_xor_b32 s3, {sW}, 2
    s_lshl_b32 s3, s3, 8
    s_add_u32 s3, s3, {MISC+G_PD}
    v_mov_b32 v{VPD}, s3
    s_lshl_b32 s3, {sJ}, 1
    s_lshl_b32 s55, 0x30003, s3
    s_mov_b32 s54, 0x0FFFFFFF
    """)
    O.lds(f"ds_read_b32 v{CC}, v{CPOLL} offset:{G_SEQ}", "pw")
    O.vwait("fl")
    O(f"""
    v_cmp_ne_u32 vcc, {sNONCE}, v31
    s_and_b64 vcc, vcc, s[54:55]
    s_cbranch_scc1 .Lc3_fl_@S
    .Lc3_go_@S:
    """)
    ctx.ool += f""".Lc3_fl_{sd}:
        s_sleep {opt.get("slp3", 0)}
        buffer_load_dword v31, v{VF}, {SWS}, {sG} offen sc1
        s_cmp_eq_u32 {sBUD}, 0
        s_waitcnt vmcnt(0)
        s_cbranch_scc1 .Lc3_go_{sd}
        s_sub_u32 {sBUD}, {sBUD}, 16
        s_max_i32 {sBUD}, {sBUD}, 0
        v_cmp_ne_u32 vcc, {sNONCE}, v31
        s_and_b64 vcc, vcc, s[54:55]
        s_cbranch_scc1 .Lc3_fl_{sd}
        s_branch .Lc3_go_{sd}""".split("\n")
    O.slabel(".Lc_p3go")
    YPOS = opt.get("p3y", 8)
    for j in range(28):
        O.vm(f"buffer_load_dwordx4 {vr(UF+4*j,4)}, v{VU}, {SWS}, {sU} offen{SC}", ("u", j))
        if j < 27: O(f"s_add_u32 {sU}, {sU}, 65536")
        if j == YPOS:
            O(f"s_add_u32 s3, {sY}, 65536")
            O.vm(f"buffer_load_dwordx4 {vr(Y1R,4)}, v{VU}, {SWS}, {sY} offen{SC}")
            O.vm(f"buffer_load_dwordx4 {vr(Y1R+4,4)}, v{VU}, {SWS}, s3 offen{SC}")
            O(f"s_add_u32 {sY}, {sY}, {WS_Y2-WS_Y1}")
            O(f"s_add_u32 s3, s3, {WS_Y2-WS_Y1}")
            O.vm(f"buffer_load_dwordx4 {vr(Y2R,4)}, v{VU}, {SWS}, {sY} offen{SC}")
            O.vm(f"buffer_load_dwordx4 {vr(Y2R+4,4)}, v{VU}, {SWS}, s3 offen{SC}", "y")
    ctx.check(O, CC, CPOLL, G_SEQ, h.thr["wo"], "pw")
    O.lds(f"ds_read_b32 v{CC}, v{CPOLL} offset:{G_PC}", "pc")
    NL = opt.get("p3nl", 4)
    items = []
    for j in range(28 - NL): items += [(j, 1), (j, 0)]
    items += [(j, 1) for j in range(28 - NL, 28)] + [(j, 0) for j in range(28 - NL, 28)]
    aw = [AddrReg(AWA), AddrReg(AWB)]
    def rd(i):
        j, t = items[i]
        p = WO_UNIT[j >> 2]*8192 + (j & 3)*2048
        o = aw[t].off(O, p, 512)
        f = BF + (i & 7)*4
        O.lds(f"ds_read_b64_tr_b16 {vr(f,2)}, v{AWA+t} offset:{o}", ("w", i))
        O.lds(f"ds_read_b64_tr_b16 {vr(f+2,2)}, v{AWA+t} offset:{o+512}", ("w", i))
    LA = 7
    fills = [(2*YPOS+4, 0, lambda: O.vwait("y"))]
    for k in range(8):
        p = PR + 2*k; t = 2 if k & 1 else 8
        g = 2*YPOS + 4
        for s_ in (f"v_lshlrev_b32 v{p}, 16, v{Y1R+k}", f"v_and_b32 v{p+1}, 0xffff0000, v{Y1R+k}",
                   f"v_lshlrev_b32 v{t}, 16, v{Y2R+k}", f"v_and_b32 v{t+1}, 0xffff0000, v{Y2R+k}",
                   f"v_sub_f32 v{p}, v{p}, v{t}", f"v_sub_f32 v{p+1}, v{p+1}, v{t+1}",
                   f"v_cvt_pk_bf16_f32 v{p+1}, v{p}, v{p+1}",
                   f"v_lshlrev_b32 v{t}, 16, v{XR+k}", f"v_and_b32 v{t+1}, 0xffff0000, v{XR+k}",
                   f"v_lshlrev_b32 v{p}, 16, v{p+1}", f"v_and_b32 v{p+1}, 0xffff0000, v{p+1}",
                   f"v_add_f32 v{p}, v{p}, v{t}", f"v_add_f32 v{p+1}, v{p+1}, v{t+1}",
                   f"v_cvt_pk_bf16_f32 v{p+1}, v{p}, v{p+1}",
                   f"v_lshlrev_b32 v{p}, 16, v{p+1}", f"v_and_b32 v{p+1}, 0xffff0000, v{p+1}"):
            fills.append((g, 1, s_))
    lastB = max(i for i, (j, t) in enumerate(items) if t == 1)
    g = lastB + 2
    fills.append((g, 0, lambda: ctx.check(O, CC, CPOLL, G_PC, 48, "pc")))
    for q in range(4):
        fills.append((g, 3, lambda q=q: O.lds(f"ds_write_b128 v{VE}, {vr(ACB+4*q,4)} offset:{q*1024}", "ex")))
    fills.append((g, 1, f"v_mov_b32 v{CT_}, 4"))
    fills.append((g, 1, lambda: O.lds(f"ds_write_b32 v{CPUB}, v{CT_} offset:{G_PD-G_PC}", "pub")))
    fills.append((g, 1, f"v_xor_b32 v{VE}, 8192, v{VE}"))
    for i in range(LA): rd(i)
    seen = set(); fi = 0
    def dofill(f):
        if callable(f[2]): f[2]()
        else: O(f[2])
    for i, (j, t) in enumerate(items):
        if j not in seen: O.vwait(("u", j)); seen.add(j)
        O.lwait(("w", i))
        O(MF(ACB if t else ACA, BF + (i & 7)*4, UF + 4*j, j == 0))
        if i + LA < len(items): rd(i + LA)
        bud = 6
        while fi < len(fills) and fills[fi][0] <= i and bud >= fills[fi][1]:
            bud -= fills[fi][1]; dofill(fills[fi]); fi += 1
    while fi < len(fills): dofill(fills[fi]); fi += 1
    O.slabel(".Lc_p3mm")
    O.lds(f"ds_read_b32 v{CC}, v{VPD}", "pd")
    ctx.check(O, CC, VPD, 0, 4, "pd")
    for q in range(4): O.lds(f"ds_read_b128 {vr(ACB+4*q,4)}, v{VE} offset:{q*1024}", ("er", q))
    for b in range(2):
        for k in range(4):
            kk = 4*b + k; a = ACA + 2*kk; p = PR + 2*kk
            if k % 2 == 0: O.lwait(("er", kk >> 1))
            O(f"""
            v_pk_add_f32 {vr(a,2)}, {vr(a,2)}, {vr(ACB+2*kk,2)}
            v_cvt_pk_bf16_f32 v{a+1}, v{a}, v{a+1}
            v_lshlrev_b32 v{a}, 16, v{a+1}
            v_and_b32 v{a+1}, 0xffff0000, v{a+1}
            v_pk_add_f32 {vr(a,2)}, {vr(a,2)}, {vr(p,2)}
            v_cvt_pk_bf16_f32 v{XR+kk}, v{a}, v{a+1}
            """)
        O.vm(f"buffer_store_dwordx4 {vr(XR+4*b,4)}, v{VX_}, {SOUT}, {sXO} offen offset:{b*32}")
    O.slabel(".Lc_p3end")
```

```python
import struct
import hazfix
from asmlib import vr, sr

def f2u(x): return struct.unpack("<I", struct.pack("<f", x))[0]
C0 = f2u(-2.0 * 0.7978845608028654 * 1.4426950408889634)
C1 = f2u(-2.0 * 0.7978845608028654 * 1.4426950408889634 * 0.044715)
EPS = f2u(1e-5)

XP = 30720
WS_XT = 0
WS_Y1 = 0x800000
WS_Y2 = 0xA00000
WS_U = 0xC00000
WS_ST = 0x1000000
WS_F = 0x1080000
WS_G = 0x1090000
WS_Z1 = 0x1100000
WS_USED = 0x1500000

MISC = 18 * 8192
G_SEQ, G_PC, G_PW, G_PD = 0, 1024, 2048, 10240
CTB = MISC + 3072
RTB = MISC + 9216
RT2 = 512
XPOS = [2, 5, 8, 11, 14, 0, 2, 5]
WPOS = [4, 7, 10, 13, 16, 17, 4, 7]
UPOS = {1: [8, 9, 10, 11, 12, 13, 14, 15], 2: [0, 1, 2, 3, 4, 7, 8, 9]}
DUMPA, DUMPB = 5 * 8192, 16 * 8192
EXCH = 12 * 8192
def slot_of(n): return n & 7

SX, SWIN, SWD, SWS, SDBG, SWP, SWO, SOUT, SBSP, STCH = [f"s[{i}:{i+3}]" for i in range(4, 44, 4)]
sWAVE, sRB, sJ, sNONCE, sBUD, sW = "s70", "s71", "s72", "s73", "s74", "s75"


class Stream:
    def __init__(self, ctx, name, sd):
        self.ctx = ctx; self.name = name; self.sd = sd
        self.o = []; self.lq = []; self.nvm = 0; self.vtag = {}
    def __call__(self, s):
        for ln in s.split("\n"):
            ln = ln.strip()
            if ln: self.o.append(ln.replace("@S", self.sd) if not ln.startswith(("@SRD", "@SPLIT")) else ln)
    def lds(self, s, tag=None): self.o.append(s); self.lq.append(tag)
    def lwait(self, tag):
        idx = [i for i, t in enumerate(self.lq) if t == tag]
        if not idx: return
        n = min(len(self.lq) - 1 - idx[-1], 15)
        self.wc(f"lgkmcnt({n})")
        self.lq = self.lq[len(self.lq) - n:] if n else []
    def lwaitall(self):
        if self.lq: self.o.append("s_waitcnt lgkmcnt(0)")
        self.lq = []
    def vm(self, s, tag=None):
        self.o.append(s); self.nvm += 1
        if tag is not None: self.vtag[tag] = self.nvm
    def vwait(self, tag):
        n = self.nvm - self.vtag[tag]
        assert n <= 63, n
        self.wc(f"vmcnt({n})")
    def wc(self, w):
        k = w.split("(")[0]
        if self.o and self.o[-1].startswith("s_waitcnt"):
            parts = {p.split("(")[0]: p for p in self.o[-1].split()[1:]}
            if k in parts:
                if int(parts[k][len(k)+1:-1]) <= int(w[len(k)+1:-1]): return
            parts[k] = w
            self.o[-1] = "s_waitcnt " + " ".join(parts[x] for x in sorted(parts, reverse=True))
        else: self.o.append("s_waitcnt " + w)
    def label(self, l): self.o.append(l + ":")
    def slabel(self, l): self.o.append(f"{l}_{self.sd}:")
    def fixed(self):
        f, n = hazfix.fix(self.o)
        return f


class AddrReg:
    def __init__(self, reg, base=0): self.reg = reg; self.base = base
    def off(self, st, target, span=0):
        o = target - self.base
        if o < 0 or o + span > 65535:
            nb = (target // 8192) * 8192
            d = nb - self.base
            st(f"v_add_u32 v{self.reg}, {d & 0xffffffff}, v{self.reg}")
            self.base = nb; o = target - nb
        return o


class Ctx:
    def __init__(self, opt):
        self.opt = opt; self.ool = []; self.n = 0
    def lbl(self, b):
        self.n += 1
        return f".L{b}_{self.n}"
    def trypub(self, n, vpub, vtmp):
        return [f"s_getreg_b32 s3, hwreg(HW_REG_IB_STS)",
                f"s_bfe_u32 s79, s3, {22 | (2 << 16)}",
                f"s_and_b32 s3, s3, 15",
                f"s_lshl4_add_u32 s3, s79, s3",
                f"s_sub_u32 s3, {n}, s3",
                f"v_mov_b32 v{vtmp}, s3",
                f"ds_write_b32 v{vpub}, v{vtmp}"]
    def check(self, st, vC, vpoll, goff, need, tag, extra=()):
        sp = self.lbl("sp"); rt = self.lbl("rt")
        st.lwait(tag)
        st(f"v_cmp_gt_u32 vcc, {need}, v{vC}")
        st(f"s_cbranch_vccnz {sp}")
        st.label(rt)
        self.ool += [f"{sp}:"] + list(extra) + [
            f"ds_read_b32 v{vC}, v{vpoll} offset:{goff}",
            f"s_cmp_eq_u32 {sBUD}, 0",
            f"s_waitcnt lgkmcnt(0)",
            f"s_cbranch_scc1 {rt}",
            f"s_sub_u32 {sBUD}, {sBUD}, 1",
            f"v_cmp_gt_u32 vcc, {need}, v{vC}",
            f"s_cbranch_vccnz {sp}",
            f"s_branch {rt}"]
    def nonce(self, st, reg):
        a = self.lbl("no"); b = self.lbl("nk")
        st(f"""
        v_readfirstlane_b32 {sNONCE}, v{reg}
        s_cmp_lg_u32 {sNONCE}, 0
        s_cbranch_scc0 {a}
        {b}:
        """)
        self.ool += f"""{a}:
        buffer_load_dword v{reg}, off, {SDBG}, 0 sc1
        s_cmp_eq_u32 {sBUD}, 0
        s_waitcnt vmcnt(0)
        s_cbranch_scc1 {b}
        s_sub_u32 {sBUD}, {sBUD}, 1
        v_readfirstlane_b32 {sNONCE}, v{reg}
        s_cmp_lg_u32 {sNONCE}, 0
        s_cbranch_scc0 {a}
        s_branch {b}""".split("\n")


class Sched:
    def __init__(self, ctx, O, NF, FIFO):
        self.ctx = ctx; self.O = O; self.main = []; self.loads = []; self.fills = []
        self.slot = 0; self.NF = NF; self.FIFO = FIFO
    def newslot(self):
        s = self.slot % self.NF; self.slot += 1; return s
    def load(self, tag, fn, gate, slot=None): self.loads.append(dict(tag=tag, fn=fn, bar=gate, slot=slot))
    def M(self, text, frags=(), marks=(), name=None, pre=None):
        self.main.append(dict(kind="m", text=text, frags=list(frags), marks=list(marks), name=name or f"m{len(self.main)}", pre=pre))
    def X(self, name, fn, marks=(), frags=()):
        self.main.append(dict(kind="x", fn=fn, frags=list(frags), marks=list(marks), name=name))
    def insert_before(self, name, dist, item):
        i = [k for k, m in enumerate(self.main) if m["name"] == name][0]
        k = i; n = 0
        while k > 0 and n < dist:
            k -= 1
            if self.main[k]["kind"] == "m": n += (1 if "32x32" in self.main[k]["text"] else (0.5 if "16x16" in self.main[k]["text"] else 0.25))
            elif self.main[k].get("chk"): k += 1; break
        self.main.insert(k, item)
    def F(self, text, gate=None, cost=None):
        for ln in text.split("\n"):
            ln = ln.strip()
            if not ln: continue
            c = cost if cost is not None else (2 if ln.split()[0] in hazfix.TRANS else 1)
            self.fills.append(dict(kind="v", text=ln, cost=c, gate=gate))
    def FL(self, text, tag, gate=None): self.fills.append(dict(kind="l", text=text, tag=tag, cost=1, gate=gate))
    def FW(self, tag): self.fills.append(dict(kind="w", tag=tag, cost=0, gate=None))
    def MK(self, name): self.fills.append(dict(kind="k", name=name, cost=0, gate=None))
    def FX(self, fn, cost=2, gate=None): self.fills.append(dict(kind="x", fn=fn, cost=cost, gate=gate))
    def emit(self, budget, lmax, shared=False):
        O = self.O; main = self.main; loads = self.loads; fills = self.fills
        idx = {m["name"]: i for i, m in enumerate(main)}
        def gidx(g):
            if g is None: return -1
            if isinstance(g, tuple):
                i = idx[g[0]]; n = 0
                while n < g[1] and i < len(main) - 1:
                    i += 1
                    if main[i]["kind"] == "m": n += 1
                return i
            return idx[g]
        users = {}
        for i, m in enumerate(main):
            for tg in m["frags"]: users[tg] = i
        prev = {}
        for ld in loads:
            g = gidx(ld["bar"])
            if ld["slot"] is not None:
                if ld["slot"] in prev: g = max(g, users[prev[ld["slot"]]])
                prev[ld["slot"]] = ld["tag"]
            ld["g"] = g
        for f in fills: f["g"] = gidx(f["gate"])
        li = fi = 0; done = set(); issued = set()
        def ef(f):
            if f["kind"] == "v": O(f["text"])
            elif f["kind"] == "l": O.lds(f["text"], f["tag"])
            elif f["kind"] == "w": O.lwait(f["tag"])
            elif f["kind"] == "k": done.add(f["name"])
            elif f["kind"] == "x": f["fn"]()
        for i, m in enumerate(main):
            for mk in m["marks"]:
                while mk not in done:
                    f = fills[fi]
                    assert f["g"] < i, (m["name"], mk, f)
                    ef(f); fi += 1
            for tg in m["frags"]:
                while tg not in issued:
                    ld = loads[li]
                    assert ld["g"] < i, (m["name"], ld["tag"], ld["g"], i)
                    ld["fn"](); issued.add(ld["tag"]); li += 1
                O.lwait(tg)
            if m.get("pre"): m["pre"]()
            if m["kind"] == "m": O(m["text"])
            else: m["fn"]()
            n = 0; lm = lmax(i, m)
            while li < len(loads) and loads[li]["g"] <= i and n < lm:
                n += loads[li]["fn"](); issued.add(loads[li]["tag"]); li += 1
            if m["kind"] == "m":
                bud = budget(i, m)
                if shared: bud = max(0, bud - n)
                while fi < len(fills) and fills[fi]["g"] <= i and bud >= fills[fi]["cost"] and (bud > 0 or fills[fi]["cost"] == 0):
                    bud -= fills[fi]["cost"]; ef(fills[fi]); fi += 1
        while li < len(loads):
            loads[li]["fn"](); li += 1
        while fi < len(fills):
            ef(fills[fi]); fi += 1

def MF(acc, a, b, first): return f"v_mfma_f32_32x32x16_bf16 {vr(acc,16)}, {vr(a,4)}, {vr(b,4)}, {'0' if first else vr(acc,16)}"
PERM = """
v_and_b32 v{d}, 0x13, v0
v_bfe_u32 v{t}, v0, 2, 1
v_lshl_or_b32 v{d}, v{t}, 3, v{d}
v_bfe_u32 v{t}, v0, 3, 1
v_lshl_or_b32 v{d}, v{t}, 2, v{d}
"""
```

```python
from gzlib import *

HPOLL, HPUB, HC, HT = 10, 11, 12, 13
CPOLL, CPUB, CC, CT_ = 10, 11, 13, 15
HTAG = 55

class H:
    def __init__(self, ctx, sd):
        self.ctx = ctx; self.e = Stream(ctx, "h", sd); self.thr = {}
    def trypub(self, n=None):
        e = self.e
        L = self.ctx.trypub(e.nvm if n is None else n, HPUB, HT)
        for x in L[:-1]: e(x)
        e.lds(L[-1], "pub")
    def pre(self, goff, tag, reg=HPOLL): self.e.lds(f"ds_read_b32 v{HC}, v{reg} offset:{goff}", tag)
    def chk(self, goff, need, tag, reg=HPOLL, n=None):
        self.ctx.check(self.e, HC, reg, goff, need, tag, self.ctx.trypub(self.e.nvm if n is None else n, HPUB, HT))
    def wait(self, goff, need, reg=HPOLL, n=None):
        self.pre(goff, "pc", reg); self.chk(goff, need, "pc", reg, n)
    def pubw(self, val):
        self.e(f"v_mov_b32 v{HT}, {val}")
        self.e.lds(f"ds_write_b32 v{HPUB}, v{HT} offset:{G_PW}", "pub")


def p1_helper(ctx, sd, hooks):
    opt = ctx.opt
    h = H(ctx, sd); e = h.e; thr = h.thr
    Y = sd == "y"
    S16 = opt.get("p2s", 16) == 16
    ZO = (lambda b: (b >> 1)*512 + (b & 1)*128) if S16 else (lambda b: b*256)
    VX, VW = 4, 8
    CS, CD = 14, 16
    CTW = 18
    PAR = 24
    CF = 28
    CA = 44
    NON = 52
    e(f"""
    v_lshrrev_b32 v1, 3, v0
    v_and_b32 v2, 7, v0
    v_lshrrev_b32 v3, 4, v0
    v_xor_b32 v3, v2, v3
    v_lshlrev_b32 v3, 4, v3
    v_lshl_add_u32 v{VX}, v1, 10, v3
    v_xor_b32 v{VX+1}, 64, v{VX}
    v_add_u32 v{VX+2}, {16*1024-2048}, v{VX}
    v_add_u32 v{VX+3}, {24*1024-3072}, v{VX+1}
    v_add_u32 v{VX+1}, {8*1024-1024}, v{VX+1}
    v_bfe_u32 v3, v0, 4, 1
    v_lshlrev_b32 v3, 2, v3
    v_xor_b32 v2, v2, v3
    v_lshlrev_b32 v2, 4, v2
    v_mul_u32_u24 v1, 3584, v1
    v_add_u32 v{VW}, v1, v2
    v_add_u32 v{VW+1}, {8*3584-1024}, v{VW}
    s_min_u32 s78, {sJ}, 6          ; jm
    s_lshl_b32 s76, {sRB}, 17
    s_lshl_b32 s3, {sW}, 15
    s_add_u32 s76, s76, s3          ; x base
    s_mul_i32 s77, {sW}, {16*3584}
    @SRD
    s_mov_b32 s44, s76
    s_lshl_b32 s46, s78, 7
    s_add_u32 s46, s46, s77
    s_add_u32 s46, s46, {1792 + (0 if Y else 7*128)}     ; z2 base
    s_lshl_b32 s48, {sW}, 11        ; e*2048
    s_lshl_b32 s49, {sW}, 12        ; e*4096
    """)
    def dma_x(s):
        e(f"s_add_u32 m0, s49, {XPOS[s]*8192}")
        e(f"s_add_u32 s3, s44, {s*128}")
        for q in range(4):
            e.vm(f"buffer_load_dwordx4 v{VX+q}, {SX}, s3 offen{' offset:%d' % (q*1024) if q else ''} lds")
    def dma_w(base, goff, unit, tag):
        e(f"s_add_u32 m0, s48, {unit*8192}")
        e(f"s_add_u32 s3, {base}, {goff}")
        e.vm(f"buffer_load_dwordx4 v{VW}, {SWIN}, s3 offen lds")
        e.vm(f"buffer_load_dwordx4 v{VW+1}, {SWIN}, s3 offen offset:1024 lds", tag)
        thr[tag] = e.nvm
    def dma_step(s):
        dma_x(s); dma_w("s46", s*64*3584, WPOS[s], (0, s))
        hooks.get(f"h_s{s}", lambda h: None)(h)
    def dma_u(U, u):
        if Y:
            e(f"s_add_u32 m0, s48, {UPOS[U][u]*8192}")
            e(f"s_add_u32 s3, s45, {u*128 + (U-1)*65536}")
            e.vm(f"buffer_load_dwordx4 v{VX}, {SWD}, s3 offen lds")
            e.vm(f"buffer_load_dwordx4 v{VX+1}, {SWD}, s3 offen offset:1024 lds", (U, u))
            thr[(U, u)] = e.nvm
        else:
            dma_w("s45", u*64*3584 + (U-1)*128, UPOS[U][u], (U, u))

    hooks.get("h_first", lambda h: None)(h)
    if opt.get("hdelay"): e(f"s_sleep {opt['hdelay']}")
    dma_step(0)
    e(f"""
    v_and_b32 v1, 3, v0
    v_mul_u32_u24 v1, 260, v1
    v_add_u32 v{HPOLL}, {MISC}, v1
    s_lshl_b32 s3, {sW}, 8
    s_add_u32 s3, s3, {MISC}
    v_lshl_add_u32 v{HPUB}, v0, 2, s3
    v_mov_b32 v{HT}, 0
    """)
    e.lds(f"ds_write_b32 v{HPUB}, v{HT}", "z")
    e.lds(f"ds_write_b32 v{HPUB}, v{HT} offset:{G_PW}", "z")
    dma_step(1)
    e.lwaitall()
    e("s_barrier")
    LA0 = 6
    for s in range(2, LA0):
        dma_step(s); h.trypub()
    e.slabel(".Lh_issued")
    hooks.get("h_issued", lambda h: None)(h)
    e.vm(f"buffer_load_dword v{NON}, off, {SDBG}, 0 sc1", "nonce")
    if Y:
        e(f"""
        s_and_b32 s45, {sJ}, 3
        s_lshl_b32 s45, s45, 17
        s_lshl_b32 s3, {sW}, 14
        s_add_u32 s45, s45, s3
        """)
    else:
        e(f"""
        s_lshl_b32 s45, s78, 8
        s_add_u32 s45, s45, s77         ; z1 base
        """)
    e(f"""
    v_bfe_u32 v1, v0, 4, 1          ; G&1
    v_bfe_u32 v2, v0, 2, 2          ; r
    v_lshl_add_u32 v1, v1, 3, v2
    v_lshlrev_b32 v1, 7, v1         ; row*128
    v_lshrrev_b32 v2, 5, v0         ; G>>1
    v_lshlrev_b32 v2, 5, v2
    v_bfe_u32 v3, v0, 3, 1
    v_lshlrev_b32 v3, 6, v3
    v_xor_b32 v2, v2, v3
    v_add_u32 v1, v1, v2
    v_and_b32 v2, 3, v0
    v_lshl_add_u32 v1, v2, 3, v1
    v_add_u32 v{CS}, s48, v1
    v_xor_b32 v{CS+1}, 64, v{CS}
    v_lshrrev_b32 v1, 5, v0
    v_xor_b32 v1, v1, v0
    v_and_b32 v1, 1, v1
    v_cmp_eq_u32 vcc, 0, v1
    v_mov_b32 v1, 0x3f803f80
    v_cndmask_b32 v{PAR}, 0, v1, vcc
    v_cndmask_b32 v{PAR+1}, 0, v1, vcc
    v_cndmask_b32 v{PAR+2}, 0, v1, vcc
    v_cndmask_b32 v{PAR+3}, 0, v1, vcc
    s_lshl_b32 s3, {sW}, 3
    s_add_u32 s3, s3, {CTB}
    v_lshl_add_u32 v{CTW}, v0, 5, s3
    v_and_b32 v1, 0x33, v0
    v_bfe_u32 v2, v0, 2, 1
    v_bfe_u32 v3, v0, 3, 1
    v_lshl_or_b32 v1, v2, 3, v1
    v_lshl_or_b32 v1, v3, 2, v1                 ; perm(l)
    s_mov_b32 s52, 0xFFFF0000
    s_mov_b32 s53, 0xFFFF0000
    s_mov_b32 s54, 0
    s_mov_b32 s55, -1
    s_mov_b32 s56, 0xFFFF
    s_mov_b32 s57, 0
    """)
    if Y:
        e(f"""
        v_and_b32 v1, 15, v1
        v_lshrrev_b32 v2, 4, v0
        v_lshlrev_b32 v2, 3, v2
        v_lshl_add_u32 v1, v1, 5, v2
        s_lshl_b32 s3, {sW}, 9
        s_add_u32 s3, s3, {CTB}
        v_add_u32 v{CTW+1}, s3, v1
        v_and_b32 v1, 15, v0
        v_lshlrev_b32 v2, 7, v1
        v_lshrrev_b32 v1, 1, v1
        v_lshrrev_b32 v3, 4, v0
        v_xor_b32 v1, v1, v3
        v_lshl_add_u32 v1, v1, 4, v2
        v_add_u32 v{CD}, s48, v1
        v_xor_b32 v{CD+1}, 64, v{CD}
        """)
    else:
        e(f"v_lshl_add_u32 v{CTW+1}, v1, 5, s3")
    cs = [AddrReg(CS), AddrReg(CS+1)]
    cd = [AddrReg(CD), AddrReg(CD+1)]
    def cs_reads(U, u, set_):
        f = CF + set_*8
        p = (WPOS[u] if U == 0 else UPOS[U][u]) * 8192
        if Y and U:
            for kk in range(2):
                o = cd[kk].off(e, p)
                e.lds(f"ds_read_b128 {vr(f+kk*4,4)}, v{CD+kk} offset:{o}", ("cs", U, u))
        else:
            for mm in range(2):
                o = cs[mm].off(e, p, 512)
                e.lds(f"ds_read_b64_tr_b16 {vr(f+mm*4,2)}, v{CS+mm} offset:{o}", ("cs", U, u))
                e.lds(f"ds_read_b64_tr_b16 {vr(f+mm*4+2,2)}, v{CS+mm} offset:{o+512}", ("cs", U, u))
    def cs_mfma(U, u, set_):
        f = CF + set_*8
        wd = Y and U
        e.lwait(("cs", U, u))
        for mm in range(0 if opt.get("nocs") else 2):
            acc = CA if wd else CA + 4*mm
            src = "0" if (u == 0 and (not wd or mm == 0)) else vr(acc, 4)
            e(f"v_mfma_f32_16x16x32_bf16 {vr(acc,4)}, {vr(PAR,4)}, {vr(f+mm*4,4)}, {src}")
    def ct_write(ph):
        if Y and ph:
            e(f"v_add_f32 v1, v{CA}, v{CA+1}")
            e(f"v_cndmask_b32_e64 v1, 0, v1, s[56:57]")
        else:
            e(f"""
            v_cndmask_b32_e64 v1, v{CA}, v{CA+1}, s[52:53]
            v_cndmask_b32_e64 v2, v{CA+4}, v{CA+5}, s[52:53]
            v_cndmask_b32_e64 v1, v1, v2, s[54:55]
            """)
        e(f"""
        v_cvt_pk_bf16_f32 v2, v1, v1
        v_lshlrev_b32 v2, 16, v2
        v_sub_f32 v3, v1, v2
        v_cvt_pk_bf16_f32 v22, v1, v3
        v_and_b32 v2, 0xffff0000, v22
        v_sub_f32 v3, v3, v2
        v_cvt_pk_bf16_f32 v23, v3, 0
        """)
        e.lds(f"ds_write_b64 v{CTW+(1 if ph else 0)}, v[22:23] offset:{ph*2048}", "ct")
        h.pubw(ph + 1)

    groups = [(1, lambda: dma_step(6)), (2, lambda: dma_step(7)),
              (3, lambda: [dma_u(1, u) for u in (0, 1, 2)]),
              (4, lambda: [dma_u(1, u) for u in (3, 4, 5)]),
              (5, lambda: [dma_u(1, 6), dma_u(1, 7)]),
              (6, lambda: [dma_u(2, 0), dma_u(2, 1)]),
              (7, lambda: [dma_u(2, u) for u in (2, 3, 4)]),
              (8, lambda: [dma_u(2, 5)])]
    ZA = 64
    R, SD, K0, K1 = 96, 97, 98, 99
    S_, TAG, Q_ = 54, HTAG, 56
    DA, PA, SCW, SCR, GA, PDA, RA = 57, 58, 59, 60, 61, 62, 63
    TM = 100
    ZP = 108
    PL = 128
    ZPOS = """v_and_b32 v2, 3, v0
    v_bfe_u32 v3, v0, 2, 1
    v_lshl_or_b32 v2, v3, 4, v2
    v_bfe_u32 v3, v0, 3, 1
    v_lshl_or_b32 v2, v3, 2, v2""" if S16 else "v_and_b32 v2, 15, v0"
    setup2 = f"""
    v_lshl_add_u32 v{DA}, v0, 4, s49
    v_add_u32 v{DA}, {DUMPA}, v{DA}
    v_add_u32 v53, {DUMPB-DUMPA}, v{DA}
    v_and_b32 v1, 31, v0
    v_lshrrev_b32 v2, 5, v0
    v_lshlrev_b32 v{PA}, 3, v2
    v_lshl_add_u32 v{PA}, v1, 4, v{PA}
    {PERM.format(d=3, t=1)}
    s_lshl_b32 s3, {sW}, 7
    s_add_u32 s3, s3, {RTB}
    v_lshl_add_u32 v{RA}, v3, 2, s3
    v_bfe_u32 v1, v3, 1, 3
    v_lshlrev_b32 v1, 4, v1
    v_lshl_add_u32 v1, v3, 7, v1
    v_lshl_add_u32 v1, v2, 3, v1
    s_add_u32 s3, s49, {DUMPB}
    v_add_u32 v{SCW}, s3, v1
    v_lshrrev_b32 v1, 4, v0
    v_bfe_u32 v2, v0, 2, 2
    v_lshl_add_u32 v1, v1, 3, v2                ; row
    v_bfe_u32 v2, v1, 1, 3
    v_bfe_u32 v3, v0, 1, 1
    v_xor_b32 v2, v2, v3
    v_lshlrev_b32 v2, 4, v2
    v_lshl_add_u32 v2, v1, 7, v2
    v_and_b32 v3, 1, v0
    v_lshl_add_u32 v2, v3, 3, v2
    v_add_u32 v{SCR}, s3, v2
    v_lshrrev_b32 v1, 4, v0
    v_mul_u32_u24 v1, {XP}, v1
    {ZPOS}
    v_lshl_add_u32 v{GA}, v2, 4, v1
    s_lshl_b32 s3, {sW}, 8
    s_add_u32 s3, s3, {MISC+G_PD}
    v_mov_b32 v{PDA}, s3
    s_lshl_b32 s61, {sRB}, 2
    s_add_u32 s61, s61, {sW}
    s_lshl_b32 s58, s61, 13
    s_add_u32 s58, s58, {WS_ST}
    s_add_u32 s59, s58, 4096
    s_add_u32 s78, s78, {0 if Y else 7}         ; zi
    s_lshl_b32 s60, s78, 9
    s_add_u32 s60, s60, s58
    ; flag
    s_lshl_b32 s62, s61, 2
    s_lshl_b32 s3, s78, 8
    s_add_u32 s62, s62, s3
    s_add_u32 s62, s62, {WS_F + 16*256}
    s_mul_i32 s61, s61, {4*XP}
    s_lshl_b32 s3, s78, 10
    s_add_u32 s61, s61, s3
    s_add_u32 s61, s61, {WS_XT + 1024*16}
    v_mov_b32 v{S_}, 0
    v_mov_b32 v{Q_}, 0
    """
    e(setup2)
    hooks.get("h_setup", lambda h: None)(h)
    for s in range(8):
        e.vwait((0, s)); h.trypub()
        e.slabel(f".Lh_s{s}")
        cs_reads(0, s, s & 1)
        h.pre(G_PC, "pc")
        cs_mfma(0, s, s & 1)
        if s == 7: ct_write(0)
        if opt.get("hsleep") and s == 0: e.vwait((0, 5)); h.trypub(); e(f"s_sleep {opt['hsleep']}")
        h.chk(G_PC, groups[s][0], "pc")
        groups[s][1]()
        h.trypub()
    h.wait(0, 1, PDA)
    e.slabel(".Lh_dump")
    e.lds(f"ds_read_b32 v{R}, v{RA}", "rt")
    e.lds(f"ds_read_b32 v{SD}, v{RA} offset:{RT2}", "rt")
    for q in range(8):
        e.lds(f"ds_read_b128 {vr(ZA+4*q,4)}, v{DA if q < 4 else 53} offset:{(q&3)*1024}", ("d", q))
    e.vwait((1, 1))
    cs_reads(1, 0, 0); cs_reads(1, 1, 1)
    e.lwait("rt")
    e(f"""
    v_mul_f32 v1, v{R}, v{R}
    v_mul_f32 v{K0}, {C0}, v{R}
    v_mul_f32 v1, v1, v{R}
    v_mul_f32 v{K1}, {C1}, v1
    """)
    def gelu(q):
        tm = [TM + (q & 1)*4 + k for k in range(4)]
        u = [ZA + 4*q + k for k in range(4)]
        e.lwait(("d", q))
        for k in range(4): e(f"v_mul_f32 v{tm[k]}, v{u[k]}, v{u[k]}")
        for k in range(4): e(f"v_fma_f32 v{tm[k]}, v{K1}, v{tm[k]}, v{K0}")
        for k in range(4): e(f"v_mul_f32 v{tm[k]}, v{u[k]}, v{tm[k]}")
        for k in range(4): e(f"v_exp_f32 v{tm[k]}, v{tm[k]}")
        for k in range(4): e(f"v_fma_f32 v{tm[k]}, v{tm[k]}, v{SD}, v{SD}")
        for k in range(4): e(f"v_rcp_f32 v{tm[k]}, v{tm[k]}")
        for k in range(4): e(f"v_mul_f32 v{u[k]}, v{u[k]}, v{tm[k]}")
        for k in range(4):
            e(f"v_add_f32 v{S_}, v{S_}, v{u[k]}")
            e(f"v_fma_f32 v{Q_}, v{u[k]}, v{u[k]}, v{Q_}")
    GQ = opt.get("gq", 2)
    for q in range(8):
        gelu(q)
        if q == 0:
            cs_mfma(1, 0, 0); cs_mfma(1, 1, 1)
        if q == GQ - 1: h.pre(G_PC, "pc")
        if q == GQ:
            h.chk(G_PC, 9, "pc")
            dma_u(2, 6); dma_u(2, 7)
            hooks.get("h_u3issued", lambda h: None)(h)
        if q in (1, 3, 5): h.trypub()
    e(f"""
    v_permlane32_swap_b32 v{S_}, v{Q_}
    v_add_f32 v{S_}, v{S_}, v{Q_}
    """)
    e.vwait("nonce")
    ctx.nonce(e, NON)
    e(f"v_mov_b32 v{TAG}, {sNONCE}")
    e.vm(f"buffer_store_dwordx2 v[{S_}:{TAG}], v{PA}, {SWS}, s60 offen sc1", "gr")
    e.slabel(".Lh_gran")
    hooks.get("h_gran", lambda h: None)(h)
    def rnd(q):
        for k in range(2):
            a, b = ZA + 4*q + 2*k, ZA + 4*q + 2*k + 1
            e(f"v_cvt_pk_bf16_f32 v{b}, v{a}, v{b}")
            e(f"v_lshlrev_b32 v{a}, 16, v{b}")
            e(f"v_and_b32 v{b}, 0xffff0000, v{b}")
    for u0 in (2, 4, 6):
        e.vwait((1, u0+1)); h.trypub()
        cs_reads(1, u0, 0); cs_reads(1, u0+1, 1)
        rnd(u0 // 2 - 1)
        cs_mfma(1, u0, 0); cs_mfma(1, u0+1, 1)
    rnd(3)
    ct_write(1)
    for u0 in (0, 2, 4, 6):
        e.vwait((2, u0+1)); h.trypub()
        cs_reads(2, u0, 0); cs_reads(2, u0+1, 1)
        rnd(4 + u0 // 2)
        cs_mfma(2, u0, 0); cs_mfma(2, u0+1, 1)
    e(f"v_lshlrev_b32 v{PA}, 4, v0")
    ct_write(2)
    e.slabel(".Lh_ct2")
    hooks.get("h_prepoll", lambda h: None)(h)
    e.slabel(".Lh_poll")
    for q in range(7):
        e(f"buffer_load_dwordx4 {vr(PL+4*q,4)}, v{PA}, {SWS}, {'s58' if q < 4 else 's59'} offen offset:{(q&3)*1024} sc1")
    for q in range(7):
        e(f"s_waitcnt vmcnt({6-q})")
        b = PL + 4*q
        if q == 0:
            e(f"v_min_u32 v1, v{b+1}, v{b+3}")
            e(f"v_max_u32 v2, v{b+1}, v{b+3}")
        else:
            e(f"v_min3_u32 v1, v1, v{b+1}, v{b+3}")
            e(f"v_max3_u32 v2, v2, v{b+1}, v{b+3}")
            e(f"v_add_f32 v{PL}, v{PL}, v{b}")
            e(f"v_add_f32 v{PL+2}, v{PL+2}, v{b+2}")
    A, B = PL, PL+2
    e(f"""
    v_cmp_ne_u32 vcc, {sNONCE}, v1
    v_cmp_ne_u32 s[64:65], {sNONCE}, v2
    s_or_b64 vcc, vcc, s[64:65]
    s_cbranch_scc0 .Lh_poll_ok_@S
    s_cmp_eq_u32 {sBUD}, 0
    s_cbranch_scc1 .Lh_poll_ok_@S
    s_sub_u32 {sBUD}, {sBUD}, 16
    s_max_i32 {sBUD}, {sBUD}, 0
    s_branch .Lh_poll_@S
    .Lh_poll_ok_@S:
    """)
    hooks.get("h_postpoll", lambda h: None)(h)
    e(f"""
    v_mov_b32 v1, v{A}
    v_mov_b32 v2, v{B}
    v_permlane32_swap_b32 v{A}, v1
    v_permlane32_swap_b32 v{B}, v2
    v_add_f32 v{A}, v{A}, v1
    v_add_f32 v{B}, v{B}, v2
    v_mul_f32 v{A}, {f2u(1.0/896)}, v{A}
    v_mul_f32 v{B}, {f2u(1.0/896)}, v{B}
    v_fma_f32 v{B}, -v{A}, v{A}, v{B}
    v_cvt_pk_bf16_f32 v{A}, v{A}, v{B}
    v_and_b32 v{B}, 0xffff0000, v{A}
    v_add_f32 v{B}, {EPS}, v{B}
    v_cvt_pk_bf16_f32 v{B}, v{B}, v{B}
    v_lshlrev_b32 v{B}, 16, v{B}
    v_sqrt_f32 v{B}, v{B}
    v_lshlrev_b32 v{A}, 16, v{A}
    v_cvt_pk_bf16_f32 v{B}, v{B}, v{B}
    v_lshlrev_b32 v{B}, 16, v{B}
    v_rcp_f32 v{B}, v{B}
    v_mul_f32 v{A}, -v{A}, v{B}
    """)
    for q in range(8):
        for k in range(4):
            z = ZA + 4*q + k
            e(f"v_fma_f32 v{z}, v{z}, v{B}, v{A}")
        e(f"v_cvt_pk_bf16_f32 v{ZP+2*q}, v{ZA+4*q}, v{ZA+4*q+1}")
        e(f"v_cvt_pk_bf16_f32 v{ZP+2*q+1}, v{ZA+4*q+2}, v{ZA+4*q+3}")
        e(f"v_xor_b32 v{TM+(q&3)}, {q*16}, v{SCW}")
        e.lds(f"ds_write_b64 v{TM+(q&3)}, {vr(ZP+2*q,2)}", "sw")
        if q & 1:
            b = q >> 1
            e(f"v_xor_b32 v{TM+4}, {b*32}, v{SCR}")
            e(f"v_xor_b32 v{TM+5}, {(b*32) ^ 32}, v{SCR}")
            e.lds(f"ds_read_b64_tr_b16 {vr(ZA+8*b,2)}, v{TM+4}", ("tr", b))
            e.lds(f"ds_read_b64_tr_b16 {vr(ZA+8*b+2,2)}, v{TM+5} offset:512", ("tr", b))
            if b:
                e.lwait(("tr", b-1))
                e.vm(f"buffer_store_dwordx4 {vr(ZA+8*(b-1),4)}, v{GA}, {SWS}, s61 offen offset:{ZO(b-1)} sc1")
    e.lwait(("tr", 3))
    e.vm(f"buffer_store_dwordx4 {vr(ZA+24,4)}, v{GA}, {SWS}, s61 offen offset:{ZO(3)} sc1", "zst")
    h.pubw(4)
    hooks.get("h_preflag", lambda h: None)(h)
    e.vwait("zst")
    e("s_mov_b64 exec, 1")
    e.vm(f"buffer_store_dword v{TAG}, off, {SWS}, s62 sc1")
    e("s_mov_b64 exec, -1")
    e.slabel(".Lh_p1end")
    return h


AX, AW = 4, 8
VD, CTA = 12, 14
R, SD, K0, K1 = 16, 17, 18, 19
NM = 20
GA, RTA, ONES = 24, 25, 26
FIFO = 32; NF = 8
ACC0, ACC1, XF = 96, 64, 128
CTAG = 12

def p1_compute(ctx, sd, thr, hooks):
    opt = ctx.opt
    O = Stream(ctx, "c", sd)
    Y = sd == "y"
    SQ, SM = ACC1 + 16, ACC1 + 20
    MEAN = 27
    TMP = [[28, 29, 30, 31], [1, 2, 3, 27]]
    GPOS = """v_and_b32 v3, 7, v0
    v_lshl_add_u32 v%d, v3, 4, v%d
    v_bfe_u32 v3, v0, 3, 1
    v_lshl_add_u32 v%d, v3, 8, v%d
    v_bfe_u32 v3, v0, 4, 1
    v_lshl_add_u32 v%d, v3, 7, v%d""" % ((GA,)*6) if (Y and opt.get("p2s", 16) == 16) else f"v_lshl_add_u32 v{GA}, v1, 4, v{GA}"
    O(f"""
    {PERM.format(d=1, t=2)}
    v_lshrrev_b32 v2, 5, v0         ; h
    v_bfe_u32 v3, v1, 1, 3
    v_xor_b32 v3, v3, v2
    v_lshlrev_b32 v3, 4, v3
    v_lshl_add_u32 v3, v1, 7, v3
    s_lshl_b32 s76, {sW}, 12
    v_add_u32 v{AX}, s76, v3
    v_xor_b32 v{AX+1}, 32, v{AX}
    v_xor_b32 v{AX+2}, 64, v{AX}
    v_xor_b32 v{AX+3}, 96, v{AX}
    v_mul_u32_u24 v{GA}, {XP if Y else 32768}, v2
    {GPOS}
    s_lshl_b32 s3, {sW}, 7
    s_add_u32 s3, s3, {RTB}
    v_lshl_add_u32 v{K0}, v1, 2, s3
    v_lshl_add_u32 v{RTA}, v2, 5, s3
    v_mov_b32 v{ONES}, 0x3f803f80
    v_mov_b32 v{ONES+1}, 0x3f803f80
    v_and_b32 v1, 3, v0
    v_mul_u32_u24 v1, 260, v1
    v_add_u32 v{CPOLL}, {MISC}, v1
    s_lshl_b32 s3, {sW}, 8
    s_add_u32 s3, s3, {MISC+G_PC}
    v_lshl_add_u32 v{CPUB}, v0, 2, s3
    v_mov_b32 v{CT_}, 0
    """)
    O.lds(f"ds_write_b32 v{CPUB}, v{CT_}", "z")
    O.lds(f"ds_write_b32 v{CPUB}, v{CT_} offset:{G_PD-G_PC}", "z")
    O(f"""
    v_bfe_u32 v3, v0, 2, 2
    v_lshl_add_u32 v3, v2, 3, v3
    v_lshlrev_b32 v3, 7, v3
    v_bfe_u32 v{AW}, v0, 4, 1
    v_bfe_u32 v{AW+1}, v0, 3, 1
    v_lshl_add_u32 v{AW}, v{AW+1}, 1, v{AW}
    v_lshl_add_u32 v3, v{AW}, 5, v3
    v_and_b32 v{AW+1}, 3, v0
    v_lshl_add_u32 v{AW}, v{AW+1}, 3, v3
    v_xor_b32 v{AW+1}, 64, v{AW}
    s_add_u32 s3, s76, {DUMPA}
    v_lshl_add_u32 v{VD}, v0, 4, s3
    v_and_b32 v1, 31, v0
    v_lshlrev_b32 v{CTA}, 4, v2
    v_lshl_add_u32 v{CTA}, v1, 5, v{CTA}
    v_add_u32 v{CTA}, {CTB}, v{CTA}
    v_lshlrev_b32 v1, 7, v0
    @SRD
    """)
    O.lq = []
    hooks.get("c_first", lambda O: None)(O)
    O("s_barrier")
    O(f"""
    s_mov_b32 s44, 0xAAAAAAAA
    s_mov_b32 s45, 0xAAAAAAAA
    s_mov_b32 s46, 0xCCCCCCCC
    s_mov_b32 s47, 0xCCCCCCCC
    s_lshl_b32 s54, {sRB}, 2
    s_add_u32 s54, s54, {sW}        ; 4rb+w
    """)
    if Y:
        O(f"""
        s_lshl_b32 s57, s54, 2
        s_lshl_b32 s3, {sJ}, 9
        s_add_u32 s57, s57, s3
        s_add_u32 s57, s57, {WS_F}
        s_mul_i32 s54, s54, {4*XP}
        s_lshl_b32 s3, {sJ}, 11         ; f0*16 = 128jj*16
        s_add_u32 s54, s54, s3
        s_add_u32 s55, s54, {2*XP}
        """)
    else:
        O(f"""
        s_min_u32 s3, {sJ}, 6
        s_lshl_b32 s3, s3, 19           ; 16jm*32768
        s_lshl_b32 s54, s54, 9          ; (128rb+32w)*16
        s_add_u32 s54, s54, s3
        s_add_u32 s54, s54, {WS_Z1}
        """)
    hooks.get("c_start", lambda O: None)(O)
    if opt.get("prio"): O(f"s_setprio {opt['prio']}")
    S = Sched(ctx, O, NF, FIFO)
    ax = [AddrReg(AX + k) for k in range(4)]
    aw = [AddrReg(AW + k) for k in range(2)]
    PD = opt.get("pred", 3)
    def CHK(name, goff, need):
        S.X(name, lambda: (ctx.check(O, CC, CPOLL, goff, need, ("pre", name)), O.slabel(".Lc_" + name)))
        S.main[-1]["chk"] = True
        S.insert_before(name, PD, dict(kind="x", fn=lambda: O.lds(f"ds_read_b32 v{CC}, v{CPOLL} offset:{goff}", ("pre", name)),
                                       frags=[], marks=[], name="P" + name))
    def pub(val, off=0):
        O(f"v_mov_b32 v{CT_}, {val}")
        O.lds(f"ds_write_b32 v{CPUB}, v{CT_}" + (f" offset:{off}" if off else ""), "pub")
        return 1
    def PUBL(val): S.load(("pub", val), lambda: pub(val), None)
    state = dict(adj=False, perm=False)
    def ld_x(s, ks, gate):
        def fn():
            o = ax[ks].off(O, XPOS[s]*8192)
            O.lds(f"ds_read_b128 {vr(XF+(s*4+ks)*4,4)}, v{AX+ks} offset:{o}", ("x", s, ks)); return 1
        S.load(("x", s, ks), fn, gate)
    def ld_w(U, u, ks, T, gate):
        sl = S.newslot(); f = FIFO + 4*sl; tag = (U, u, ks, T)
        def fn():
            if U and not state["adj"]:
                for k in range(4): O(f"v_subrev_u32 v{AX+k}, s76, v{AX+k}")
                state["adj"] = True
            if Y and U:
                o = ax[ks].off(O, UPOS[U][u]*8192 + T*4096)
                O.lds(f"ds_read_b128 {vr(f,4)}, v{AX+ks} offset:{o}", tag); return 1
            if U and not state["perm"]:
                for k in range(2):
                    O(f"""
                    v_bfe_u32 v{K1}, v{AW+k}, 3, 1
                    v_bfe_u32 v{CT_}, v{AW+k}, 4, 1
                    v_xor_b32 v{K1}, v{K1}, v{CT_}
                    v_mul_u32_u24 v{K1}, 24, v{K1}
                    v_xor_b32 v{AW+k}, v{AW+k}, v{K1}
                    """)
                state["perm"] = True
            p = (WPOS[u] if U == 0 else UPOS[U][u]) * 8192 + ks*2048
            o = aw[T].off(O, p, 512)
            O.lds(f"ds_read_b64_tr_b16 {vr(f,2)}, v{AW+T} offset:{o}", tag)
            O.lds(f"ds_read_b64_tr_b16 {vr(f+2,2)}, v{AW+T} offset:{o+512}", tag); return 2
        S.load(tag, fn, gate, sl)
        return f, tag
    def corr(ph, T, acc, gate, marks=()):
        sl = S.newslot(); f = FIFO + 4*sl; tag = ("ct", ph, T)
        def fn():
            O.lds(f"ds_read_b128 {vr(f,4)}, v{CTA} offset:{ph*2048+T*1024}", tag); return 1
        S.load(tag, fn, gate, sl)
        txt = MF(acc, NM, f, False) if (Y and ph) else MF(acc, f, NM, False)
        S.M(txt, frags=[tag], marks=marks, name=f"C{ph}_{T}")
    def M4(acc, a, b, first): return f"v_mfma_f32_4x4x4_16b_bf16 {vr(acc,4)}, {vr(a,2)}, {vr(b,2)}, {'0' if first else vr(acc,4)}"
    BPOS = opt.get("bpos", 5)
    CHK("K0", G_SEQ, thr[(0, opt.get("k0w", 0))])
    for s in range(8):
        g = f"K{s}"
        st_, big = [], []
        if s == 7:
            for ks in range(4): ld_x(s, ks, g)
        for ks in range(4):
            xf = XF + (s*4+ks)*4; first = (s == 0 and ks == 0)
            if s < 7: ld_x(s, ks, g)
            f1, t1 = ld_w(0, s, ks, 1, g); f0, t0 = ld_w(0, s, ks, 0, g)
            st_ += [[dict(text=M4(SQ, xf, xf, first), frags=[("x", s, ks)], name=f"S{s}{ks}a"),
                     dict(text=M4(SM, ONES, xf, first), name=f"S{s}{ks}b")],
                    [dict(text=M4(SQ, xf+2, xf+2, False), name=f"S{s}{ks}c"),
                     dict(text=M4(SM, ONES, xf+2, False), name=f"S{s}{ks}d")]]
            big += [dict(text=MF(ACC0+16, f1, xf, first), frags=[t1], name=f"M{s}_{ks}_1"),
                    dict(text=MF(ACC0, f0, xf, first), frags=[t0], name=f"M{s}_{ks}_0")]
        PUBL(s + 1)
        flat = []
        if s == 7:
            for k in range(4): flat += st_[2*k] + st_[2*k+1] + [big[k]]
            flat += big[4:]
        else:
            for k in range(8): flat += st_[k] + [big[k]]
        nb = 0
        for d in flat:
            if opt.get("nost") and "4x4" in d["text"] and not (s == 7 or (opt["nost"] == 2 and d["name"][-1] in "ac")): d["text"] = "s_nop 0"
            S.M(**d)
            if "32x32" in d["text"]:
                nb += 1
                if nb == BPOS:
                    if s < 7: CHK(f"K{s+1}", G_SEQ, thr[(0, s+1)])
                    else: CHK("KA0", G_SEQ, thr[(1, 1)])
    CPOS = opt.get("cpos", 2)
    C1POS = opt.get("c1pos", 2)
    gates = {1: ["KA0", "KA0", "KA1", "KA1", "KA1", "KA2", "KA2", "KA2"],
             2: ["KB0", "KB0", "KB1", "KB1", "KB1", "KB2", "KB3", "KB3"]}
    n = 0
    for U in (1, 2):
        ACC = ACC1 if U == 1 else ACC0
        for u in range(8):
            if U == 2 and u == C1POS:
                corr(1, 0, ACC1, "KC1"); corr(1, 1, ACC1+16, "KC1")
            for ks in range(4):
                xf = XF + (u*4+ks)*4; first = (u == 0 and ks == 0)
                for T in (0, 1):
                    f, tg = ld_w(U, u, ks, T, gates[U][u])
                    mk = []
                    if first and U == 1 and T == 1: mk = ["SQ"]
                    if first and U == 2 and T == 0: mk = ["DUMP"]
                    S.M(MF(ACC+16*T, xf, f, first) if Y else MF(ACC+16*T, f, xf, first), frags=[tg], name=f"A{U}_{u}_{ks}_{T}", marks=mk)
                    n += 1
                    if n == CPOS - 1: CHK("KC0", G_PW, 1)
                    if n == CPOS:
                        corr(0, 0, ACC0, "KC0", marks=["NM"]); corr(0, 1, ACC0+16, "KC0")
                k3 = (U, u, ks)
                if k3 == (1, 1, 1): CHK("KA1", G_SEQ, thr[(1, 4)])
                if k3 == (1, 4, 1): CHK("KA2", G_SEQ, thr[(1, 7)])
                if k3 == (1, 7, 1): CHK("KB0", G_SEQ, thr[(2, 1)])
                if k3 == (2, 1, 1): CHK("KB1", G_SEQ, thr[(2, 4)])
                if k3 == (2, 4, 1): CHK("KB2", G_SEQ, thr[(2, 5)])
                if k3 == (2, 5, 1): CHK("KB3", G_SEQ, thr[(2, 7)])
                if k3 == (2, C1POS-1, 2): CHK("KC1", G_PW, 2)
                if k3 == (2, 6, 3): CHK("KC2", G_PW, 3)
            pv = {(1, 1): 9, (1, 7): 10, (2, 1): 11, (2, 3): 12, (2, 5): 13, (2, 7): 16}.get((U, u))
            if pv: PUBL(pv)
    corr(2, 0, ACC0, "KC2"); corr(2, 1, ACC0+16, "KC2")
    S.X("END", lambda: None)
    S.F(f"""
    v_cndmask_b32_e64 v1, v{SQ}, v{SQ+1}, s[44:45]
    v_cndmask_b32_e64 v2, v{SQ+2}, v{SQ+3}, s[44:45]
    v_mov_b32 v{MEAN}, v{SM}
    v_cndmask_b32_e64 v1, v1, v2, s[46:47]
    """, gate=("S73d", 1))
    S.MK("SQ")
    S.F(f"""
    v_permlane32_swap_b32 v1, v{MEAN}
    v_add_f32 v1, v1, v{MEAN}
    v_mul_f32 v1, {f2u(1.0/512)}, v1
    v_mov_b32 v{MEAN}, v1
    v_permlane32_swap_b32 v1, v{MEAN}
    v_cvt_pk_bf16_f32 v{NM}, v{MEAN}, v{MEAN}
    v_xor_b32 v{NM}, 0x80008000, v{NM}
    v_mov_b32 v{NM+1}, v{NM}
    v_mov_b32 v{NM+2}, v{NM}
    v_mov_b32 v{NM+3}, v{NM}
    """)
    S.MK("NM")
    S.F(f"""
    v_fma_f32 v1, -v{MEAN}, v{MEAN}, v1
    v_cvt_pk_bf16_f32 v1, v1, v1
    v_lshlrev_b32 v1, 16, v1
    v_add_f32 v1, {EPS}, v1
    v_cvt_pk_bf16_f32 v1, v1, v1
    v_lshlrev_b32 v1, 16, v1
    v_sqrt_f32 v1, v1
    v_cvt_pk_bf16_f32 v1, v1, v1
    v_lshlrev_b32 v{SD}, 16, v1
    v_rcp_f32 v{R}, v{SD}
    v_add_u32 v2, {DUMPB-DUMPA}, v{VD}
    """)
    S.FL(f"ds_write_b32 v{K0}, v{SD} offset:{RT2}", "rt")
    S.FL(f"ds_write_b32 v{K0}, v{R}", "rt")
    for q in range(8):
        S.FL(f"ds_write_b128 v{VD if q < 4 else 2}, {vr(ACC0+4*q,4)} offset:{(q&3)*1024}", "dump", gate=(f"C0_{q//4}", 2))
    S.FX(lambda: pub(1, G_PD - G_PC), 2)
    S.MK("DUMP")
    S.FX(lambda: O.vm(f"buffer_load_dword v{CTAG}, off, {SDBG}, 0 sc1", "nonce"), 1)
    hooks.get("c_fills0", lambda S, O: None)(S, O)
    if Y:
        RV = XF
        for k in range(4):
            S.FL(f"ds_read_b128 {vr(RV+4*k,4)}, v{RTA} offset:{(k>>1)*64+(k&1)*16}", ("rv", k), gate=("A2_0_3_1", 1))
        for U in (1, 2):
            ACC = ACC1 if U == 1 else ACC0
            for T in (0, 1):
                for b in range(2):
                    a0 = ACC + 16*T + 8*b
                    if T == 0 and U == 1: S.FW(("rv", 2*b+1))
                    S.F("\n".join(f"v_mul_f32 v{a0+k}, v{a0+k}, v{RV+8*b+k}" for k in range(8)), gate=((f"C{U}_{T}", 2) if U == 1 else f"C2_{T}"))
                    S.F("\n".join(f"v_cvt_pk_bf16_f32 v{a0+k}, v{a0+2*k}, v{a0+2*k+1}" for k in range(4)))
                    S.FX(lambda a0=a0, T=T, b=b, U=U: O.vm(f"buffer_store_dwordx4 {vr(a0,4)}, v{GA}, {SWS}, {'s55' if b else 's54'} offen offset:{T*512+(U-1)*1024} sc1"), 2)
            if U == 1:
                S.FX(lambda: (O.vwait("nonce"), ctx.nonce(O, CTAG), O("v_lshlrev_b32 v1, 8, v0")), 3)
                hooks.get("c_fills1", lambda S, O: None)(S, O)
        def flag():
            hooks.get("c_preflag", lambda O: None)(O)
            O(f"""
            s_mov_b64 exec, 3
            s_waitcnt vmcnt(0)
            buffer_store_dword v{CTAG}, v1, {SWS}, s57 offen sc1
            s_mov_b64 exec, -1
            """)
        S.FX(flag, 2)
    else:
        S.F(f"""
        v_mul_f32 v1, v{R}, v{R}
        v_mul_f32 v{K0}, {C0}, v{R}
        v_mul_f32 v1, v1, v{R}
        v_mul_f32 v{K1}, {C1}, v1
        """)
        S.FX(lambda: (O.vwait("nonce"), ctx.nonce(O, CTAG)), 3, gate="KC1")
        gc = [0]
        def group(ACC, T, q, gate):
            tm = TMP[gc[0] & 1]; gc[0] += 1
            u = [ACC + 16*T + 4*q + k for k in range(4)]
            t_ = ""
            for k in range(4): t_ += f"v_mul_f32 v{tm[k]}, v{u[k]}, v{u[k]}\n"
            for k in range(4): t_ += f"v_fma_f32 v{tm[k]}, v{K1}, v{tm[k]}, v{K0}\n"
            for k in range(4): t_ += f"v_mul_f32 v{tm[k]}, v{u[k]}, v{tm[k]}\n"
            for k in range(4): t_ += f"v_exp_f32 v{tm[k]}, v{tm[k]}\n"
            for k in range(4): t_ += f"v_fma_f32 v{tm[k]}, v{tm[k]}, v{SD}, v{SD}\n"
            for k in range(4): t_ += f"v_rcp_f32 v{tm[k]}, v{tm[k]}\n"
            for k in range(4): t_ += f"v_mul_f32 v{u[k]}, v{u[k]}, v{tm[k]}\n"
            d = ACC + 16*T + 8*(q>>1) + 2*(q&1)
            t_ += f"v_cvt_pk_bf16_f32 v{d}, v{u[0]}, v{u[1]}\nv_cvt_pk_bf16_f32 v{d+1}, v{u[2]}, v{u[3]}\n"
            S.F(t_, gate=gate)
        def z1store(ACC, U, T, b):
            def fn():
                O(f"s_add_u32 s3, s54, {(8*(U-1)+4*T+2*b)*32768}")
                O.vm(f"buffer_store_dwordx4 {vr(ACC+16*T+8*b,4)}, v{GA}, {SWS}, s3 offen")
            S.FX(fn, 2)
        for U in (1, 2):
            ACC = ACC1 if U == 1 else ACC0
            for T in (0, 1):
                for q in range(4):
                    group(ACC, T, q, (f"C{U}_{T}", 2) if U == 1 else f"C2_{T}")
                    if q & 1: z1store(ACC, U, T, q >> 1)
            if U == 1: hooks.get("c_fills1", lambda S, O: None)(S, O)
    FB = opt.get("fb", 6)
    S.emit(lambda i, m: FB if "32x32" in m["text"] else 1, lambda i, m: 18 if m.get("chk") else (5 if m["kind"] != "m" or "32x32" in m["text"] else 1))
    O.slabel(".Lc_p1end")
    O.ax = ax; O.aw = aw
    return O
```

```python
from gzlib import *
import gz1
from gz1 import HPOLL, HPUB, HC, HT, CPOLL, CPUB, CC, CT_, AX, CTAG
import re

VP, VO, VT = 200, 204, 206
sWB, sK, sSL, sN, sNEED, sLAST, sOB = "s50", "s51", "s63", "s66", "s67", "s68", "s69"
PRE_PC = [10, 10, 10, 11, 12, 13, 13, 16]
PRE_PW = [2, 2, 2, 3, 3, 3, 3, 3]
WO_UNIT = [16, 10, 12, 14, 0, 2, 4]

def ids(sd, tb, fb, sg, opt={}):
    t = ids0(sd, tb, fb, sg)
    if opt.get("sprd"):
        t += f"""
        s_mul_i32 s3, {tb}, {opt['sprd']}
        s_add_u32 {sg}, {sg}, s3
        s_and_b32 {sg}, {sg}, 31
        """
    return t

def ids0(sd, tb, fb, sg):
    if sd == "y":
        return f"""
        s_and_b32 {tb}, s2, 1
        s_lshl_b32 {tb}, {tb}, 3
        s_lshr_b32 s3, s2, 5
        s_add_u32 {tb}, {tb}, s3
        s_bfe_u32 {sg}, s2, {3 | (2 << 16)}
        s_bfe_u32 {fb}, s2, {1 | (1 << 16)}
        s_lshl2_add_u32 {fb}, {fb}, {sg}
        s_lshl_b32 {sg}, {sg}, 3
        """
    return f"""
        s_mov_b32 {tb}, {sRB}
        s_add_u32 {fb}, {sJ}, 8
        s_lshl_b32 {sg}, {sJ}, 2
        """

def install_hooks(ctx, sd, hooks):
    opt = ctx.opt
    def setup(h):
        e = h.e
        e(ids(sd, sWB, sSL, sK, opt))
        if opt.get("norot"): e(f"s_mov_b32 {sK}, 0")
        e(f"""
        s_lshl2_add_u32 {sWB}, {sWB}, {sW}
        s_lshl_b32 {sWB}, {sWB}, 17             ; (tblk*128+32e)*4096
        s_lshl_b32 {sK}, {sK}, 7
        v_lshrrev_b32 v1, 3, v0
        v_and_b32 v2, 7, v0
        v_lshrrev_b32 v3, 4, v0
        v_xor_b32 v3, v2, v3
        v_lshlrev_b32 v3, 4, v3
        v_lshl_add_u32 v{VP}, v1, 12, v3
        v_xor_b32 v{VP+1}, 64, v{VP}
        v_add_u32 v{VP+2}, {16*4096-2048}, v{VP}
        v_add_u32 v{VP+3}, {24*4096-3072}, v{VP+1}
        v_add_u32 v{VP+1}, {8*4096-1024}, v{VP+1}
        v_bfe_u32 v3, v0, 4, 1
        v_lshlrev_b32 v3, 2, v3
        v_xor_b32 v2, v2, v3
        v_lshlrev_b32 v2, 4, v2
        v_lshl_add_u32 v{VO}, v1, 10, v2
        v_add_u32 v{VO+1}, {8*1024-1024}, v{VO}
        s_lshl_b32 {sOB}, {sW}, 14
        s_lshl_b32 s3, {sJ}, 7
        s_add_u32 {sOB}, {sOB}, s3              ; 16e*1024 + d64*128
        v_lshlrev_b32 v{VT}, 7, v0
        """)
        h.npre = 0
    def pre(h, upto):
        e = h.e
        while h.npre < upto:
            n = h.npre; h.npre += 1
            if n == 0 or PRE_PC[n] != PRE_PC[n-1]: h.wait(G_PC, PRE_PC[n])
            if n == 0 or PRE_PW[n] != PRE_PW[n-1]: h.wait(G_PW, PRE_PW[n])
            dma_p(h, slot_of(n)*16384, ("p", n))
    pl = opt.get("pl", 3000)
    a, b, c_ = pl // 1000, pl // 100 % 10, pl // 10 % 10
    old = hooks.get("h_setup", lambda h: None)
    hooks["h_setup"] = lambda h: (old(h), setup(h))
    hooks["h_prepoll"] = lambda h: pre(h, a)
    hooks["h_postpoll"] = lambda h: pre(h, b)
    hooks["h_preflag"] = lambda h: pre(h, c_)
    ctx.pre = pre

def dma_p(h, slot, tag=None):
    e = h.e
    e(f"s_add_u32 m0, s49, {slot}")
    e(f"s_add_u32 s3, {sWB}, {sK}")
    for q in range(4):
        e.vm(f"buffer_load_dwordx4 v{VP+q}, {SWP}, s3 offen{' offset:%d' % (q*1024) if q else ''} lds" if not (h.ctx.opt.get("p2nw") and tag is None) else "s_nop 0", tag)
    e(f"s_add_u32 {sK}, {sK}, {0 if h.ctx.opt.get('p2wk') and tag is None else 128}")
    e(f"s_and_b32 {sK}, {sK}, 4095")
    if tag: h.thr[tag] = e.nvm

def p2_helper(ctx, sd, h):
    e = h.e; opt = ctx.opt
    ctx.pre(h, 8)
    N0 = e.nvm; h.thr["N0"] = N0
    e.lwaitall()
    e(f"""
    s_mov_b32 {sN}, {N0}
    s_mov_b32 {sNEED}, 17
    s_mov_b32 {sSL}, {slot_of(8)*16384}
    s_mov_b32 {sLAST}, -1
    """)
    if sd == "g":
        e(f"""
        s_cmp_lt_u32 {sJ}, 7
        s_cbranch_scc1 .Lh2_loop_@S
        s_waitcnt vmcnt(0)
        s_branch .Lh2_done_@S
        """)
    tp = ctx.trypub(sN, HPUB, HT)
    e(f"""
    .Lh2_loop_@S:
    ds_read_b32 v{HC}, v{HPOLL} offset:{G_PC}
    """)
    e("\n".join(tp[:5]))
    e(f"""
    s_cmp_eq_u32 s3, {sLAST}
    s_cbranch_scc1 .Lh2_np_@S
    s_mov_b32 {sLAST}, s3
    {tp[5]}
    {tp[6]}
    .Lh2_np_@S:
    s_waitcnt lgkmcnt(0)
    v_cmp_gt_u32 vcc, {sNEED}, v{HC}
    s_cbranch_vccz .Lh2_go_@S
    s_cmp_eq_u32 {sBUD}, 0
    s_cbranch_scc1 .Lh2_go_@S
    s_sub_u32 {sBUD}, {sBUD}, 1
    s_sleep {opt.get('hs2', 1)}
    s_branch .Lh2_loop_@S
    .Lh2_go_@S:
    """)
    dma_p(h, sSL)
    e(f"""
    s_add_u32 {sSL}, {sSL}, 16384
    s_and_b32 {sSL}, {sSL}, {8*16384-1}
    s_add_u32 {sN}, {sN}, 4
    s_add_u32 {sNEED}, {sNEED}, 1
    s_cmp_lt_u32 {sNEED}, {17+24}
    s_cbranch_scc1 .Lh2_loop_@S
    .Lh2_done_@S:
    """)
    e.nvm = N0 + 96
    if opt.get("stop", 3) >= 3:
        e(f"""
        s_lshr_b32 s3, s2, 3
        s_lshl2_add_u32 s3, s3, {sW}
        s_min_u32 s3, s3, 111
        s_lshl_b32 s3, s3, 13
        """)
        e.vm(f"buffer_load_dword v{VT+1}, v{VT}, {SWO}, s3 offen")
        h.wait(G_PW, 4)
        for j in range(7):
            if j: h.wait(G_PC, 16 + 24 + j)
            for kh in range(2):
                e(f"s_add_u32 m0, s48, {(WO_UNIT[j]+kh)*8192}")
                e(f"s_add_u32 s3, {sOB}, {(7*kh+j)*65536}")
                e.vm(f"buffer_load_dwordx4 v{VO}, {SWO}, s3 offen lds")
                e.vm(f"buffer_load_dwordx4 v{VO+1}, {SWO}, s3 offen offset:1024 lds")
            h.trypub()
        h.thr["wo"] = e.nvm
    tp = ctx.trypub(e.nvm, HPUB, HT)
    e(".Lh2_dr_@S:")
    e("\n".join(tp))
    e(f"""
    s_cmp_eq_u32 s3, {e.nvm}
    s_cbranch_scc1 .Lh2_end_@S
    s_sleep 1
    s_branch .Lh2_dr_@S
    .Lh2_end_@S:
    s_waitcnt vmcnt(0) lgkmcnt(0)
    """)
    e.slabel(".Lh_p2end")

AX2, VA, VS, VF, VB, VFR = 16, 20, 24, 25, 26, 30
BF, ACC, AF = 32, 64, 128
sTB, sFB, sKA, sAB, sT, sIT, sO0, sO1, sFL, sGF = "s48", "s49", "s50", "s51", "s52", "s53", "s58", "s59", "s60", "s61"
sA = "s56"
LA = 8

def p2_compute(ctx, sd, O, h):
    opt = ctx.opt
    Y = sd == "y"
    N0 = h.thr["N0"]
    O(ids(sd, sTB, sFB, sKA, opt))
    if opt.get("norot"): O(f"s_mov_b32 {sKA}, 0")
    O(f"""
    s_lshl_b32 {sFL}, {sFB}, 1
    s_lshr_b32 s3, {sW}, 1
    s_add_u32 {sFL}, {sFL}, s3
    s_lshl_b32 {sFL}, {sFL}, 8
    s_add_u32 {sFL}, {sFL}, {WS_F}
    v_lshlrev_b32 v{VF}, 2, v0
    """)
    if not Y:
        O(f"""
        s_cmp_eq_u32 {sJ}, 7
        s_cbranch_scc1 .Lc2_skip
        """)
    O.vm(f"buffer_load_dword v31, v{VF}, {SWS}, {sFL} offen sc1", "fl")
    O(PERM.format(d=1, t=2))
    if not Y:
        O(f"""
        v_lshlrev_b32 v3, 1, v1
        s_lshl_b32 s3, {sTB}, 8
        """)
        for T in range(4): O.vm(f"buffer_load_ushort v{VB+T}, v3, {SBSP}, s3 offen offset:{T*64}", "bias")
    O(f"""
    v_lshrrev_b32 v2, 5, v0
    v_lshlrev_b32 v{VS}, 15, v2
    v_lshl_add_u32 v{VS}, v1, 4, v{VS}
    v_mul_u32_u24 v{VA}, {XP}, v2
    v_lshl_add_u32 v{VA}, v1, 4, v{VA}
    v_add_u32 v{VA+1}, {2*XP}, v{VA}
    v_add_u32 v{VA+2}, {4*XP}, v{VA}
    v_add_u32 v{VA+3}, {6*XP}, v{VA}
    s_lshl2_add_u32 s3, {sFB}, {sW}             ; 4fb+w
    s_lshl_b32 {sAB}, s3, 9                     ; f0*16
    s_mul_i32 {sKA}, {sKA}, {8*XP}
    s_lshl_b32 {sO0}, s3, 17
    s_lshl_b32 {sGF}, s3, 2
    s_lshl_b32 s3, {sTB}, 11
    s_add_u32 {sO0}, {sO0}, s3
    s_add_u32 {sO0}, {sO0}, {WS_Y1}
    s_add_u32 {sO1}, {sO0}, 65536
    s_lshl_b32 s3, {sTB}, 8
    s_add_u32 {sGF}, {sGF}, s3
    s_add_u32 {sGF}, {sGF}, {WS_G + (128 if Y else -128)}
    s_mov_b32 {sT}, {N0 - 28}
    s_mov_b32 {sIT}, 3
    v_mov_b32 v{VFR}, 16
    """)
    for k in range(4):
        b = O.ax[k].base
        if b: O(f"v_subrev_u32 v{AX+k}, {b}, v{AX+k}")
        O(f"v_add_u32 v{AX2+k}, 65536, v{AX+k}")
    if Y:
        for r in range(64): O(f"v_mov_b32 v{ACC+r}, 0")
    else:
        O.vwait("bias")
        for T in range(4): O(f"v_lshlrev_b32 v{VB+T}, 16, v{VB+T}")
        for r in range(64): O(f"v_mov_b32 v{ACC+r}, v{VB+r//16}")
    O(f"""
    s_waitcnt vmcnt(0)
    v_cmp_ne_u32 vcc, {sNONCE}, v31
    s_cbranch_vccnz .Lc2_fl_@S
    .Lc2_go_@S:
    """)
    ctx.ool += f""".Lc2_fl_{sd}:
        buffer_load_dword v31, v{VF}, {SWS}, {sFL} offen sc1
        s_cmp_eq_u32 {sBUD}, 0
        s_waitcnt vmcnt(0)
        s_cbranch_scc1 .Lc2_go_{sd}
        s_sub_u32 {sBUD}, {sBUD}, 16
        s_max_i32 {sBUD}, {sBUD}, 0
        v_cmp_ne_u32 vcc, {sNONCE}, v31
        s_cbranch_vccnz .Lc2_fl_{sd}
        s_branch .Lc2_go_{sd}""".split("\n")
    O.slabel(".Lc_p2go")
    def nextk():
        O(f"""
        s_add_u32 {sA}, {sAB}, {sKA}
        s_add_u32 {sKA}, {sKA}, {8*XP}
        s_cmp_eq_u32 {sKA}, {256*XP}
        s_cselect_b32 {sKA}, 0, {sKA}
        """)
    def lda(n, ks):
        if ks == 0: nextk()
        r = AF + ((n & 7)*4 + ks)*4
        O.vm(f"buffer_load_dwordx4 {vr(r,4)}, v{VA+ks}, {SWS}, {sA} offen sc1" if not (opt.get("p2na") and n >= 8) else "s_nop 0", ("a", n, ks))
    items = []
    for n in range(30):
        for ks in range(4):
            for T in range(4): items.append((n, ks, T))
    for T in range(4):
        for n in (30, 31):
            for ks in range(4): items.append((n, ks, T))
    NI = len(items)
    first = {}; last = {}; lastA = {}; firstA = {}; lastT = {}
    for j, (n, ks, T) in enumerate(items):
        first.setdefault(n, j); last[n] = j; lastA[(n, ks)] = j; firstA.setdefault((n, ks), j); lastT[T] = j
    def rdb(j):
        n, ks, T = items[j]
        s = slot_of(n)
        reg = (AX if s < 4 else AX2) + ks
        O.lds(f"ds_read_b128 {vr(BF+(j&7)*4,4)}, v{reg} offset:{(s&3)*16384 + T*4096}", ("b", j))
        if j == last[n] and not (n == 30):
            O(f"v_add_u32 v{VFR}, {2 if n == 31 else 1}, v{VFR}")
            O.lds(f"ds_write_b32 v{CPUB}, v{VFR}", "pub")
    def prerd(n): O.lds(f"ds_read_b32 v{CC}, v{CPOLL} offset:{G_SEQ}", ("pc", n))
    def chk(n):
        ctx.check(O, CC, CPOLL, G_SEQ, sT, ("pc", n))
        O(f"s_add_u32 {sT}, {sT}, 4")
    PDIST = opt.get("p2pd", 3)
    chkpos = {first[n] - LA: n for n in range(32)}
    prepos = {first[n] - LA - PDIST: n for n in range(32)}
    fills = []
    def ZR(T, b): return AF + (T*2 + b)*4
    for T in range(4):
        g = lastT[T] + 2
        for b in range(2):
            a0 = ACC + 16*T + 8*b
            if Y:
                for k in range(4): fills.append((g, 1, f"v_cvt_pk_bf16_f32 v{a0+k}, v{a0+2*k}, v{a0+2*k+1}"))
            else:
                fills.append((g, 0, lambda T=T, b=b: O.vwait(("z", T, b))))
                for k in range(4):
                    t = 2 if k & 1 else 8
                    z = ZR(T, b) + k
                    fills.append((g, 1, f"v_lshlrev_b32 v{t}, 16, v{z}"))
                    fills.append((g, 1, f"v_and_b32 v{t+1}, 0xffff0000, v{z}"))
                    fills.append((g, 2, f"v_pk_mul_f32 {vr(a0+2*k,2)}, {vr(a0+2*k,2)}, {vr(t,2)}"))
                    fills.append((g, 1, f"v_cvt_pk_bf16_f32 v{a0+k}, v{a0+2*k}, v{a0+2*k+1}"))
            fills.append((g, 2, lambda a0=a0, T=T, b=b: O.vm(f"buffer_store_dwordx4 {vr(a0,4)}, v{VS}, {SWS}, {sO1 if b else sO0} offen offset:{T*512} sc1")))
    prerd(0)
    for n in range(2):
        for ks in range(4): lda(n, ks)
    chk(0)
    O.slabel(".Lc_p2full0")
    for j in range(LA):
        rdb(j)
    for n in range(2, 8):
        for ks in range(4): lda(n, ks)
    marks = []
    fi = 0
    for j, (n, ks, T) in enumerate(items):
        if j % 128 == 0: marks.append(len(O.o))
        if firstA[(n, ks)] == j: O.vwait(("a", n, ks))
        O.lwait(("b", j))
        O(MF(ACC + 16*T, AF + ((n & 7)*4 + ks)*4, BF + (j & 7)*4, False))
        if j in prepos: prerd(prepos[j])
        if j in chkpos: chk(chkpos[j])
        if j + LA < NI: rdb(j + LA)
        if lastA[(n, ks)] == j:
            if n + 8 < 32: lda(n + 8, ks)
            elif not Y and n in (24, 25):
                T_, b_ = ((n - 24)*4 + ks) >> 1, ks & 1
                if n == 24 and ks == 0:
                    O(f"s_add_u32 {sA}, {sO0}, {WS_Z1 - WS_U}")
                    O(f"s_add_u32 {sAB}, {sO1}, {WS_Z1 - WS_U}")
                O.vm(f"buffer_load_dwordx4 {vr(ZR(T_, b_),4)}, v{VS}, {SWS}, {sAB if b_ else sA} offen offset:{T_*512} sc1", ("z", T_, b_))
        bud = opt.get("p2fb", 6)
        while fi < len(fills) and fills[fi][0] <= j and bud >= fills[fi][1]:
            f = fills[fi]; bud -= f[1]; fi += 1
            if callable(f[2]): f[2]()
            else: O(f[2])
    O.slabel(".Lc2_mmend")
    while fi < len(fills):
        f = fills[fi]; fi += 1
        if callable(f[2]): f[2]()
        else: O(f[2])
    its = [O.o[marks[k]:marks[k+1]] for k in range(3)]
    norm = lambda L: [re.sub(r"\.L(sp|rt)_\d+", r".L\1", x) for x in L]
    assert norm(its[1]) == norm(its[2])
    if norm(its[0]) != norm(its[1]):
        for a, b in zip(norm(its[0]), norm(its[1])):
            if a != b: print("IT0 diff:", a, "|", b)
        assert all((a == b or a.startswith("s_waitcnt")) for a, b in zip(norm(its[0]), norm(its[1]))) and len(its[0]) == len(its[1])
    tail = [f"s_sub_u32 {sIT}, {sIT}, 1", f"s_cmp_lg_u32 {sIT}, 0", f"s_cbranch_scc1 .Lc2_loop_{sd}"]
    body = its[1]
    f1, n1 = hazfix.fix(body + tail); f2, n2 = hazfix.fix(body + tail + body + tail)
    assert n2 == 2*n1, (n1, n2)
    dead = set()
    for k in (0, 2):
        for x in its[k]:
            m = re.match(r"s_cbranch_vccnz (\.Lsp_\d+)", x)
            if m: dead.add(m.group(1))
    ool = []; skip = False
    for x in ctx.ool:
        x = x.strip()
        if x.endswith(":"): skip = x[:-1] in dead
        if not skip: ool.append(x)
    ctx.ool = ool
    O.o[marks[0]:marks[3]] = [f".Lc2_loop_{sd}:"] + body + tail + [f".Lc2_last_{sd}:"]
    O(f"""
    s_waitcnt vmcnt(0)
    s_mov_b64 exec, 1
    buffer_store_dword v{CTAG}, off, {SWS}, {sGF} sc1
    s_mov_b64 exec, -1
    """)
    O.lwaitall()
    if not Y:
        O(".Lc2_join:")
        ctx.ool += f""".Lc2_skip:
        ds_read_b32 v{CC}, v{CPOLL} offset:{G_SEQ}
        s_cmp_eq_u32 {sBUD}, 0
        s_waitcnt lgkmcnt(0)
        s_cbranch_scc1 .Lc2_skip2
        s_sub_u32 {sBUD}, {sBUD}, 1
        v_cmp_gt_u32 vcc, {N0}, v{CC}
        s_sleep 2
        s_cbranch_vccnz .Lc2_skip
        .Lc2_skip2:
        v_mov_b32 v{VFR}, 48
        ds_write_b32 v{CPUB}, v{VFR}
        s_waitcnt vmcnt(0) lgkmcnt(0)
        s_branch .Lc2_join""".split("\n")
    O.lq = []; O.nvm = 0; O.vtag = {}
    O.slabel(".Lc_p2end")


def M16(acc, a, b): return f"v_mfma_f32_16x16x32_bf16 {vr(acc,4)}, {vr(a,4)}, {vr(b,4)}, {vr(acc,4)}"

def p2_compute16(ctx, sd, O, h):
    opt = ctx.opt
    Y = sd == "y"
    N0 = h.thr["N0"]
    BX, VA, VS, VF, VFR = 4, 20, 24, 25, 30
    VB = BF
    O(ids(sd, sTB, sFB, sKA, opt))
    if opt.get("norot"): O(f"s_mov_b32 {sKA}, 0")
    O(f"""
    s_lshl_b32 {sFL}, {sFB}, 1
    s_lshr_b32 s3, {sW}, 1
    s_add_u32 {sFL}, {sFL}, s3
    s_lshl_b32 {sFL}, {sFL}, 8
    s_add_u32 {sFL}, {sFL}, {WS_F}
    v_lshlrev_b32 v{VF}, 2, v0
    """)
    if not Y:
        O(f"""
        s_cmp_eq_u32 {sJ}, 7
        s_cbranch_scc1 .Lc2_skip
        """)
    O.vm(f"buffer_load_dword v31, v{VF}, {SWS}, {sFL} offen sc1", "fl")
    O(f"""
    v_and_b32 v1, 15, v0
    v_lshrrev_b32 v2, 4, v0
    """)
    if not Y:
        O(f"""
        v_lshlrev_b32 v3, 1, v1
        s_lshl_b32 s3, {sTB}, 8
        """)
        for nt in range(8): O.vm(f"buffer_load_ushort v{VB+nt}, v3, {SBSP}, s3 offen offset:{nt*32}", "bias")
    O(f"""
    v_lshlrev_b32 v{VS}, 15, v2
    v_lshl_add_u32 v{VS}, v1, 4, v{VS}
    v_mul_u32_u24 v{VA}, {XP}, v2
    v_lshl_add_u32 v{VA}, v1, 4, v{VA}
    v_add_u32 v{VA+1}, {4*XP}, v{VA}
    v_lshrrev_b32 v3, 1, v1
    v_xor_b32 v3, v3, v2
    v_lshlrev_b32 v3, 4, v3
    v_lshl_add_u32 v{BX}, v1, 7, v3
    v_xor_b32 v{BX+1}, 64, v{BX}
    v_add_u32 v{BX+2}, 65536, v{BX}
    v_add_u32 v{BX+3}, 65536, v{BX+1}
    s_lshl2_add_u32 s3, {sFB}, {sW}             ; 4fb+w
    s_lshl_b32 {sAB}, s3, 9                     ; f0*16
    s_mul_i32 {sKA}, {sKA}, {8*XP}
    s_lshl_b32 {sO0}, s3, 17
    s_lshl_b32 {sGF}, s3, 2
    s_lshl_b32 s3, {sTB}, 11
    s_add_u32 {sO0}, {sO0}, s3
    s_add_u32 {sO0}, {sO0}, {WS_Y1}
    s_add_u32 {sO1}, {sO0}, {WS_Z1 - WS_U}
    s_lshl_b32 s3, {sTB}, 8
    s_add_u32 {sGF}, {sGF}, s3
    s_add_u32 {sGF}, {sGF}, {WS_G + (128 if Y else -128)}
    s_mov_b32 {sT}, {N0 - 28}
    s_mov_b32 {sIT}, 3
    v_mov_b32 v{VFR}, 16
    """)
    if Y:
        for r in range(64): O(f"v_mov_b32 v{ACC+r}, 0")
    else:
        O.vwait("bias")
        for r in range(64): O(f"v_lshlrev_b32 v{ACC+r}, 16, v{VB+r//8}")
    O(f"""
    s_waitcnt vmcnt(0)
    v_cmp_ne_u32 vcc, {sNONCE}, v31
    s_cbranch_vccnz .Lc2_fl_@S
    .Lc2_go_@S:
    """)
    ctx.ool += f""".Lc2_fl_{sd}:
        buffer_load_dword v31, v{VF}, {SWS}, {sFL} offen sc1
        s_cmp_eq_u32 {sBUD}, 0
        s_waitcnt vmcnt(0)
        s_cbranch_scc1 .Lc2_go_{sd}
        s_sub_u32 {sBUD}, {sBUD}, 16
        s_max_i32 {sBUD}, {sBUD}, 0
        v_cmp_ne_u32 vcc, {sNONCE}, v31
        s_cbranch_vccnz .Lc2_fl_{sd}
        s_branch .Lc2_go_{sd}""".split("\n")
    O.slabel(".Lc_p2go")
    def nextk(n):
        O(f"s_add_u32 {sA}, {sA}, {0 if opt.get('p2ak') and n >= 8 else 8*XP}")
        if n % 4 == 0 or opt.get('sprd', 0) % 4:
            O(f"s_cmp_eq_u32 {sA}, {sKA}")
            O(f"s_cselect_b32 {sA}, {sAB}, {sA}")
    def AR(n, kk, mt): return AF + ((n & 7)*4 + kk*2 + mt)*4
    def lda(n, kk, mt):
        O.vm(f"buffer_load_dwordx4 {vr(AR(n,kk,mt),4)}, v{VA+kk}, {SWS}, {sA} offen{' offset:256' if mt else ''} sc1" if not (opt.get("p2na") and 2*n + kk >= 15) else "s_nop 0", ("a", n, kk, mt))
    NM_ = opt.get("p2merge", 2)
    items = []
    for n in range(32 - NM_):
        for kk in range(2):
            for nt in range(8): items.append((n, kk, nt))
    for nt in range(8):
        for n in range(32 - NM_, 32):
            for kk in range(2): items.append((n, kk, nt))
    NI = len(items)
    first = {}; last = {}; lastA = {}; firstA = {}; lastT = {}
    for j, (n, kk, nt) in enumerate(items):
        first.setdefault(n, j); last[n] = j; lastA[(n, kk)] = j; firstA.setdefault((n, kk), j); lastT[nt] = j
    def rdb(j):
        n, kk, nt = items[j]
        s = slot_of(n)
        reg = BX + (0 if s < 4 else 2) + kk
        O.lds(f"ds_read_b128 {vr(BF+(j&7)*4,4)}, v{reg} offset:{(s&3)*16384 + nt*2048}", ("b", j))
    def prerd(n): O.lds(f"ds_read_b32 v{CC}, v{CPOLL} offset:{G_SEQ}", ("pc", n))
    def chk(n): ctx.check(O, CC, CPOLL, G_SEQ, sT, ("pc", n))
    PDIST = opt.get("p2pd", 5)
    ex = {}
    pw = {}
    def EX(j, fn): ex.setdefault(j, []).append(fn)
    def zld(nt_): O.vm(f"buffer_load_dwordx4 {vr(ZR(nt_),4)}, v{VS}, {SWS}, {sO1} offen offset:{nt_*256} sc1", ("z", nt_))
    for n in range(32):
        if 0 < n <= 32 - NM_:
            cp = first[n] - LA
            EX(cp - PDIST, lambda n=n: prerd(n))
            pw[cp] = ("pc", n)
            EX(cp, lambda n=n: chk(n))
            EX(cp - 2, lambda n=n: O(f"s_add_u32 {sT}, {sT}, {4*NM_ if n == 32 - NM_ else 4}"))
        if not (32 - NM_ <= n < 31):
            lp = last[n] - LA
            EX(lp - 1, lambda n=n: O(f"v_add_u32 v{VFR}, {NM_ if n == 31 else 1}, v{VFR}"))
            EX(lp + 2, lambda: O.lds(f"ds_write_b32 v{CPUB}, v{VFR}", "pub"))
        for kk in range(2):
            for mt in range(2):
                p = lastA[(n, kk)] + 1 + mt + (2 if kk == 0 else 0)
                if n + 8 < 32: EX(p, lambda n=n, kk=kk, mt=mt: lda(n + 8, kk, mt))
                elif not Y and n in (24, 25): EX(p, lambda n=n, kk=kk, mt=mt: zld((n - 24)*4 + kk*2 + mt))
        if n + 8 < 32: EX(first[n] + 4, lambda n=n: nextk(n + 8))
    fills = []
    def ZR(nt): return AF + nt*4
    for nt in range(8):
        g = lastT[nt] + 2
        a0 = ACC + 8*nt
        if Y:
            for k in range(4): fills.append((g, 1, f"v_cvt_pk_bf16_f32 v{a0+k}, v{a0+2*k}, v{a0+2*k+1}"))
        else:
            fills.append((g, 0, lambda nt=nt: O.vwait(("z", nt))))
            for k in range(4):
                t = 2 if k & 1 else 8
                z = ZR(nt) + k
                fills.append((g, 1, f"v_lshlrev_b32 v{t}, 16, v{z}"))
                fills.append((g, 1, f"v_and_b32 v{t+1}, 0xffff0000, v{z}"))
                fills.append((g, 1, f"v_mul_f32 v{a0+2*k}, v{a0+2*k}, v{t}"))
                fills.append((g, 1, f"v_mul_f32 v{a0+2*k+1}, v{a0+2*k+1}, v{t+1}"))
                fills.append((g, 1, f"v_cvt_pk_bf16_f32 v{a0+k}, v{a0+2*k}, v{a0+2*k+1}"))
        fills.append((g, 1, lambda a0=a0, nt=nt: O.vm(f"buffer_store_dwordx4 {vr(a0,4)}, v{VS}, {SWS}, {sO0} offen offset:{nt*256} sc1")))
    O(f"""
    s_add_u32 {sA}, {sAB}, {sKA}
    s_add_u32 {sKA}, {sAB}, {256*XP}
    """)
    prerd(0)
    for n in range(8):
        if n: nextk(n)
        for q in range(4):
            if not (n == 7 and q >= 2): lda(n, q >> 1, q & 1)
        if n == 1:
            chk(0)
            O.slabel(".Lc_p2full0")
            for j in range(LA): rdb(j)
    EX(0, lambda: lda(7, 1, 0)); EX(1, lambda: lda(7, 1, 1))
    marks = []
    fi = [0]
    def dofills(j, bud):
        while fi[0] < len(fills) and fills[fi[0]][0] <= j and bud >= fills[fi[0]][1]:
            f = fills[fi[0]]; bud -= f[1]; fi[0] += 1
            if callable(f[2]): f[2]()
            else: O(f[2])
    FB = opt.get("p2fb", 2)
    WG = opt.get("p2wg", 2)
    AL = opt.get("p2al", 0)
    for j, (n, kk, nt) in enumerate(items):
        if j % 128 == 0: marks.append(len(O.o)); O("; it")
        if firstA[(n, kk)] == j: O.vwait(("a", n, kk, 1))
        if j in pw: O.lwait(pw[j])
        if j % WG == 0: O.lwait(("b", min(j + WG - 1, NI - 1)))
        if AL: O(".p2align 3")
        O(M16(ACC + 8*nt, AR(n, kk, 0), BF + (j & 7)*4))
        for fn in ex.get(j, []): fn()
        dofills(j, FB)
        if AL: O(".p2align 3")
        O(M16(ACC + 8*nt + 4, AR(n, kk, 1), BF + (j & 7)*4))
        if j + LA < NI: rdb(j + LA)
        dofills(j, FB - 1)
    O.slabel(".Lc2_mmend")
    dofills(10**9, 10**9)
    roll(ctx, sd, O, marks)
    p2_tail(ctx, sd, O, N0, VFR)

def roll(ctx, sd, O, marks):
    its = [O.o[marks[k]:marks[k+1]] for k in range(3)]
    norm = lambda L: [re.sub(r"\.L(sp|rt)_\d+", r".L\1", x) for x in L]
    assert norm(its[1]) == norm(its[2])
    assert len(its[0]) == len(its[1])
    body = list(its[1])
    for k, (a, b) in enumerate(zip(norm(its[0]), norm(its[1]))):
        if a != b:
            assert a.startswith("s_waitcnt") and b.startswith("s_waitcnt"), (a, b)
            d = {}
            for p in a.split()[1:] + b.split()[1:]:
                nm, v = p[:-1].split("("); d[nm] = min(d.get(nm, 99), int(v))
            body[k] = "s_waitcnt " + " ".join(f"{x}({d[x]})" for x in sorted(d, reverse=True))
    tail = [f"s_sub_u32 {sIT}, {sIT}, 1", f"s_cmp_lg_u32 {sIT}, 0", f"s_cbranch_scc1 .Lc2_loop_{sd}"]
    mi = [k for k, x in enumerate(body) if x.startswith("v_mfma")]
    body[mi[-3]:mi[-3]] = tail[:2]; tail = tail[2:]
    assert not any(x.startswith(("s_add", "s_cmp", "s_sub", "s_and", "s_lshl")) for x in body[mi[-3]+2:])
    f1, n1 = hazfix.fix(body + tail); f2, n2 = hazfix.fix(body + tail + body + tail)
    assert n2 == 2*n1, (n1, n2)
    dead = set()
    for k in (0, 2):
        for x in its[k]:
            m = re.match(r"s_cbranch_vccnz (\.Lsp_\d+)", x)
            if m: dead.add(m.group(1))
    ool = []; skip = False
    for x in ctx.ool:
        x = x.strip()
        if x.endswith(":"): skip = x[:-1] in dead
        if not skip: ool.append(x)
    ctx.ool = ool
    O.o[marks[0]:marks[3]] = [f".Lc2_loop_{sd}:"] + body + tail + [f".Lc2_last_{sd}:"]

def p2_tail(ctx, sd, O, N0, VFR):
    O(f"""
    s_waitcnt vmcnt(0)
    s_mov_b64 exec, 1
    buffer_store_dword v{CTAG}, off, {SWS}, {sGF} sc1
    s_mov_b64 exec, -1
    """)
    O.lwaitall()
    if sd == "g":
        O(".Lc2_join:")
        ctx.ool += f""".Lc2_skip:
        ds_read_b32 v{CC}, v{CPOLL} offset:{G_SEQ}
        s_cmp_eq_u32 {sBUD}, 0
        s_waitcnt lgkmcnt(0)
        s_cbranch_scc1 .Lc2_skip2
        s_sub_u32 {sBUD}, {sBUD}, 1
        v_cmp_gt_u32 vcc, {N0}, v{CC}
        s_sleep 2
        s_cbranch_vccnz .Lc2_skip
        .Lc2_skip2:
        v_mov_b32 v{VFR}, 48
        ds_write_b32 v{CPUB}, v{VFR}
        s_waitcnt vmcnt(0) lgkmcnt(0)
        s_branch .Lc2_join""".split("\n")
    O.lq = []; O.nvm = 0; O.vtag = {}
    O.slabel(".Lc_p2end")
```

```python
import struct
import hazfix
from asmlib import vr, sr

def f2u(x): return struct.unpack("<I", struct.pack("<f", x))[0]
C0 = f2u(-2.0 * 0.7978845608028654 * 1.4426950408889634)
C1 = f2u(-2.0 * 0.7978845608028654 * 1.4426950408889634 * 0.044715)
EPS = f2u(1e-5)

XP = 30720
WS_XT = 0
WS_Y1 = 0x800000
WS_Y2 = 0xA00000
WS_U = 0xC00000
WS_ST = 0x1000000
WS_F = 0x1080000
WS_G = 0x1090000
WS_Z1 = 0x1100000
WS_USED = 0x1500000

MISC = 18 * 8192
G_SEQ, G_PC, G_PW, G_PD = 0, 1024, 2048, 10240
CTB = MISC + 3072
RTB = MISC + 9216
RT2 = 512
XPOS = [2, 5, 8, 11, 14, 0, 2, 5]
WPOS = [4, 7, 10, 13, 16, 17, 4, 7]
UPOS = {1: [8, 9, 10, 11, 12, 13, 14, 15], 2: [0, 1, 2, 3, 4, 7, 8, 9]}
DUMPA, DUMPB = 5 * 8192, 16 * 8192
EXCH = 6 * 8192
def slot_of(n): return (n + 5) & 7

SX, SWIN, SWD, SWS, SDBG, SWP, SWO, SOUT, SBSP, STCH = [f"s[{i}:{i+3}]" for i in range(4, 44, 4)]
sWAVE, sRB, sJ, sNONCE, sBUD, sW = "s70", "s71", "s72", "s73", "s74", "s75"


class Stream:
    def __init__(self, ctx, name, sd):
        self.ctx = ctx; self.name = name; self.sd = sd
        self.o = []; self.lq = []; self.nvm = 0; self.vtag = {}
    def __call__(self, s):
        for ln in s.split("\n"):
            ln = ln.strip()
            if ln: self.o.append(ln.replace("@S", self.sd) if not ln.startswith("@SRD") else ln)
    def lds(self, s, tag=None): self.o.append(s); self.lq.append(tag)
    def lwait(self, tag):
        idx = [i for i, t in enumerate(self.lq) if t == tag]
        if not idx: return
        n = min(len(self.lq) - 1 - idx[-1], 15)
        self.wc(f"lgkmcnt({n})")
        self.lq = self.lq[len(self.lq) - n:] if n else []
    def lwaitall(self):
        if self.lq: self.o.append("s_waitcnt lgkmcnt(0)")
        self.lq = []
    def vm(self, s, tag=None):
        self.o.append(s); self.nvm += 1
        if tag is not None: self.vtag[tag] = self.nvm
    def vwait(self, tag):
        n = self.nvm - self.vtag[tag]
        assert n <= 63, n
        self.wc(f"vmcnt({n})")
    def wc(self, w):
        k = w.split("(")[0]
        if self.o and self.o[-1].startswith("s_waitcnt"):
            parts = {p.split("(")[0]: p for p in self.o[-1].split()[1:]}
            if k in parts:
                if int(parts[k][len(k)+1:-1]) <= int(w[len(k)+1:-1]): return
            parts[k] = w
            self.o[-1] = "s_waitcnt " + " ".join(parts[x] for x in sorted(parts, reverse=True))
        else: self.o.append("s_waitcnt " + w)
    def label(self, l): self.o.append(l + ":")
    def slabel(self, l): self.o.append(f"{l}_{self.sd}:")
    def fixed(self):
        f, n = hazfix.fix(self.o)
        return f


class AddrReg:
    def __init__(self, reg, base=0): self.reg = reg; self.base = base
    def off(self, st, target, span=0):
        o = target - self.base
        if o < 0 or o + span > 65535:
            nb = (target // 8192) * 8192
            d = nb - self.base
            st(f"v_add_u32 v{self.reg}, {d & 0xffffffff}, v{self.reg}")
            self.base = nb; o = target - nb
        return o


class Ctx:
    def __init__(self, opt):
        self.opt = opt; self.ool = []; self.n = 0
    def lbl(self, b):
        self.n += 1
        return f".L{b}_{self.n}"
    def trypub(self, n, vpub, vtmp):
        return [f"s_getreg_b32 s3, hwreg(HW_REG_IB_STS)",
                f"s_bfe_u32 s79, s3, {22 | (2 << 16)}",
                f"s_and_b32 s3, s3, 15",
                f"s_lshl4_add_u32 s3, s79, s3",
                f"s_sub_u32 s3, {n}, s3",
                f"v_mov_b32 v{vtmp}, s3",
                f"ds_write_b32 v{vpub}, v{vtmp}"]
    def check(self, st, vC, vpoll, goff, need, tag, extra=()):
        sp = self.lbl("sp"); rt = self.lbl("rt")
        st.lwait(tag)
        st(f"v_cmp_gt_u32 vcc, {need}, v{vC}")
        st(f"s_cbranch_vccnz {sp}")
        st.label(rt)
        self.ool += [f"{sp}:"] + list(extra) + [
            f"ds_read_b32 v{vC}, v{vpoll} offset:{goff}",
            f"s_cmp_eq_u32 {sBUD}, 0",
            f"s_waitcnt lgkmcnt(0)",
            f"s_cbranch_scc1 {rt}",
            f"s_sub_u32 {sBUD}, {sBUD}, 1",
            f"v_cmp_gt_u32 vcc, {need}, v{vC}",
            f"s_cbranch_vccnz {sp}",
            f"s_branch {rt}"]
    def nonce(self, st, reg):
        a = self.lbl("no"); b = self.lbl("nk")
        st(f"""
        v_readfirstlane_b32 {sNONCE}, v{reg}
        s_cmp_lg_u32 {sNONCE}, 0
        s_cbranch_scc0 {a}
        {b}:
        """)
        self.ool += f"""{a}:
        buffer_load_dword v{reg}, off, {SDBG}, 0 sc1
        s_cmp_eq_u32 {sBUD}, 0
        s_waitcnt vmcnt(0)
        s_cbranch_scc1 {b}
        s_sub_u32 {sBUD}, {sBUD}, 1
        v_readfirstlane_b32 {sNONCE}, v{reg}
        s_cmp_lg_u32 {sNONCE}, 0
        s_cbranch_scc0 {a}
        s_branch {b}""".split("\n")


class Sched:
    def __init__(self, ctx, O, NF, FIFO):
        self.ctx = ctx; self.O = O; self.main = []; self.loads = []; self.fills = []
        self.slot = 0; self.NF = NF; self.FIFO = FIFO
    def newslot(self):
        s = self.slot % self.NF; self.slot += 1; return s
    def load(self, tag, fn, gate, slot=None): self.loads.append(dict(tag=tag, fn=fn, bar=gate, slot=slot))
    def M(self, text, frags=(), marks=(), name=None, pre=None):
        self.main.append(dict(kind="m", text=text, frags=list(frags), marks=list(marks), name=name or f"m{len(self.main)}", pre=pre))
    def X(self, name, fn, marks=(), frags=()):
        self.main.append(dict(kind="x", fn=fn, frags=list(frags), marks=list(marks), name=name))
    def insert_before(self, name, dist, item):
        i = [k for k, m in enumerate(self.main) if m["name"] == name][0]
        k = i; n = 0
        while k > 0 and n < dist:
            k -= 1
            if self.main[k]["kind"] == "m": n += (1 if "32x32" in self.main[k]["text"] else 0.25)
            elif self.main[k].get("chk"): k += 1; break
        self.main.insert(k, item)
    def F(self, text, gate=None, cost=None):
        for ln in text.split("\n"):
            ln = ln.strip()
            if not ln: continue
            c = cost if cost is not None else (2 if ln.split()[0] in hazfix.TRANS else 1)
            self.fills.append(dict(kind="v", text=ln, cost=c, gate=gate))
    def FL(self, text, tag, gate=None): self.fills.append(dict(kind="l", text=text, tag=tag, cost=1, gate=gate))
    def FW(self, tag): self.fills.append(dict(kind="w", tag=tag, cost=0, gate=None))
    def MK(self, name): self.fills.append(dict(kind="k", name=name, cost=0, gate=None))
    def FX(self, fn, cost=2, gate=None): self.fills.append(dict(kind="x", fn=fn, cost=cost, gate=gate))
    def emit(self, budget, lmax):
        O = self.O; main = self.main; loads = self.loads; fills = self.fills
        idx = {m["name"]: i for i, m in enumerate(main)}
        def gidx(g):
            if g is None: return -1
            if isinstance(g, tuple):
                i = idx[g[0]]; n = 0
                while n < g[1] and i < len(main) - 1:
                    i += 1
                    if main[i]["kind"] == "m": n += 1
                return i
            return idx[g]
        users = {}
        for i, m in enumerate(main):
            for tg in m["frags"]: users[tg] = i
        prev = {}
        for ld in loads:
            g = gidx(ld["bar"])
            if ld["slot"] is not None:
                if ld["slot"] in prev: g = max(g, users[prev[ld["slot"]]])
                prev[ld["slot"]] = ld["tag"]
            ld["g"] = g
        for f in fills: f["g"] = gidx(f["gate"])
        li = fi = 0; done = set(); issued = set()
        def ef(f):
            if f["kind"] == "v": O(f["text"])
            elif f["kind"] == "l": O.lds(f["text"], f["tag"])
            elif f["kind"] == "w": O.lwait(f["tag"])
            elif f["kind"] == "k": done.add(f["name"])
            elif f["kind"] == "x": f["fn"]()
        for i, m in enumerate(main):
            for mk in m["marks"]:
                while mk not in done:
                    f = fills[fi]
                    assert f["g"] < i, (m["name"], mk, f)
                    ef(f); fi += 1
            for tg in m["frags"]:
                while tg not in issued:
                    ld = loads[li]
                    assert ld["g"] < i, (m["name"], ld["tag"], ld["g"], i)
                    ld["fn"](); issued.add(ld["tag"]); li += 1
                O.lwait(tg)
            if m.get("pre"): m["pre"]()
            if m["kind"] == "m": O(m["text"])
            else: m["fn"]()
            n = 0; lm = lmax(i, m)
            while li < len(loads) and loads[li]["g"] <= i and n < lm:
                n += loads[li]["fn"](); issued.add(loads[li]["tag"]); li += 1
            if m["kind"] == "m":
                bud = budget(i, m)
                while fi < len(fills) and fills[fi]["g"] <= i and bud >= fills[fi]["cost"] and (bud > 0 or fills[fi]["cost"] == 0):
                    bud -= fills[fi]["cost"]; ef(fills[fi]); fi += 1
        while li < len(loads):
            loads[li]["fn"](); li += 1
        while fi < len(fills):
            ef(fills[fi]); fi += 1

def MF(acc, a, b, first): return f"v_mfma_f32_32x32x16_bf16 {vr(acc,16)}, {vr(a,4)}, {vr(b,4)}, {'0' if first else vr(acc,16)}"
PERM = """
v_and_b32 v{d}, 0x13, v0
v_bfe_u32 v{t}, v0, 2, 1
v_lshl_or_b32 v{d}, v{t}, 3, v{d}
v_bfe_u32 v{t}, v0, 3, 1
v_lshl_or_b32 v{d}, v{t}, 2, v{d}
"""
```

```python
import sys
from gzlib import *
from asmlib import descriptor
import gz1

NAME = "gz_kernel"
HEADER = open("parallel_sum__spectral_fnet__mixer_gmlp__prompt.s.ref").read().split("; Override")[0]

def SRD(sd, role):
    t = f"""
    s_waitcnt lgkmcnt(0)
    s_mov_b32 s4, s44
    s_mov_b32 s5, s45
    s_mov_b32 s8, s56
    s_mov_b32 s9, s57
    s_mov_b32 s12, {'s50' if sd == 'y' else 's52'}
    s_mov_b32 s13, {'s51' if sd == 'y' else 's53'}
    s_mov_b32 s16, s68
    s_mov_b32 s17, s69
    s_mov_b32 s20, s66
    s_mov_b32 s21, s67
    """
    if sd == "y":
        t += """
        s_bitcmp0_b32 s2, 1
        s_cselect_b32 s24, s46, s48
        s_cselect_b32 s25, s47, s49
        """
        if role == "h": t += f"""
        s_cmp_lt_u32 {sW}, 2
        s_cselect_b32 s40, s50, s52
        s_cselect_b32 s41, s51, s53
        s_mov_b32 s42, {512*1024}
        """
    else:
        t += """
        s_mov_b32 s24, s58
        s_mov_b32 s25, s59
        """
    t += f"""
    s_mov_b32 s28, s62
    s_mov_b32 s29, s63
    s_mov_b32 s32, s64
    s_mov_b32 s33, s65
    s_mov_b32 s36, s60
    s_mov_b32 s37, s61
    """
    return [x.strip() for x in t.split("\n") if x.strip()]

def gen(opt):
    stop = opt.get("stop", 3)
    L = [f".globl {NAME}", ".p2align 8", f".type {NAME},@function", f"{NAME}:"]
    pro = f"""
    s_cmp_ge_u32 s2, 256
    s_cbranch_scc1 .Lexit
    s_load_dwordx16 s[44:59], s[0:1], 0
    s_load_dwordx8 s[60:67], s[0:1], 64
    s_load_dwordx2 s[68:69], s[0:1], 96
    v_lshrrev_b32 v1, 6, v0
    s_and_b32 {sRB}, s2, 3
    s_lshl_b32 {sRB}, {sRB}, 2
    v_readfirstlane_b32 {sWAVE}, v1
    v_and_b32 v0, 63, v0
    s_lshr_b32 s3, s2, 6
    s_add_u32 {sRB}, {sRB}, s3
    s_bfe_u32 {sJ}, s2, {3 | (3 << 16)}
    s_and_b32 {sW}, {sWAVE}, 3
    s_mov_b32 {sBUD}, {1<<18}
    s_mov_b32 s6, {2048*1024}
    s_mov_b32 s7, 0x20000
    s_mov_b32 s10, {512*3584}
    s_mov_b32 s11, 0x20000
    s_mov_b32 s14, {512*1024}
    s_mov_b32 s15, 0x20000
    s_mov_b32 s18, {WS_USED}
    s_mov_b32 s19, 0x20000
    s_mov_b32 s22, 256
    s_mov_b32 s23, 0x20000
    s_mov_b32 s26, {2048*4096}
    s_mov_b32 s27, 0x20000
    s_mov_b32 s30, {896*1024}
    s_mov_b32 s31, 0x20000
    s_mov_b32 s34, {2048*1024}
    s_mov_b32 s35, 0x20000
    s_mov_b32 s38, 4096
    s_mov_b32 s39, 0x20000
    s_mov_b32 s43, 0x20000
    s_bitcmp1_b32 s2, 2
    s_cbranch_scc1 .Lside_g
    """
    L += [x.strip() for x in pro.split("\n") if x.strip()]
    nctx = 0
    for sd in ("y", "g"):
        ctx = Ctx(opt); ctx.n = nctx
        hooks = {}
        def c_first(O, sd=sd):
            if opt.get("pretouch", 0) == 2:
                O(f"""
                s_lshr_b32 s77, s2, 3           ; i
                s_cmp_lt_u32 {sW}, 2
                s_cbranch_scc0 .Lpt_z_{sd}
                s_and_b32 s3, s2, 3
                s_lshl_b32 s3, s3, 5
                s_add_u32 s3, s3, s77
                s_lshl_b32 s3, s3, 1
                s_add_u32 s3, s3, {sW}
                s_lshl_b32 s3, s3, 13
                buffer_load_dword v31, v1, {SX}, s3 offen
                s_branch .Lpt_e_{sd}
                .Lpt_z_{sd}:
                v_lshrrev_b32 v2, 3, v0
                v_mul_u32_u24 v2, 3584, v2
                v_and_b32 v3, 7, v0
                v_min_u32 v3, 6, v3
                v_lshl_add_u32 v2, v3, 7, v2
                s_lshl_b32 s3, s77, 1
                s_add_u32 s3, s3, {sW}
                s_mul_i32 s3, s3, {8*3584}
                s_add_u32 s3, s3, {(1792 + (0 if sd == "y" else 896) - 16*3584) & 0xffffffff}
                buffer_load_dword v31, v2, {SWIN}, s3 offen
                .Lpt_e_{sd}:
                """)
            if opt.get("pretouch", 0) == 1:
                O(f"""
                s_bitcmp0_b32 s2, 0
                s_cselect_b32 s40, s50, s52
                s_cselect_b32 s41, s51, s53
                s_lshr_b32 s3, s2, 1
                s_mov_b32 s42, 4096
                s_cmp_eq_u32 {sW}, 0
                s_cselect_b32 s40, s44, s40
                s_cselect_b32 s41, s45, s41
                s_cselect_b32 s42, 8192, s42
                s_cmp_eq_u32 {sW}, 1
                s_cselect_b32 s40, s56, s40
                s_cselect_b32 s41, s57, s41
                s_cselect_b32 s42, 7168, s42
                s_cmp_eq_u32 {sW}, 3
                s_cselect_b32 s40, s62, s40
                s_cselect_b32 s41, s63, s41
                s_cselect_b32 s42, 3584, s42
                s_cmp_eq_u32 {sW}, 2
                s_cselect_b32 s3, s3, s2
                s_mul_i32 s3, s3, s42
                s_add_u32 s40, s40, s3
                s_addc_u32 s41, s41, 0
                """)
                O.vm(f"buffer_load_dword v31, v1, {STCH}, 0 offen")
            if opt.get("ctouch", 1):
                O(f"""
                s_getpc_b64 s[78:79]
                .Lpc_{sd}:
                s_sub_u32 s78, s78, .Lpc_{sd}-.Lside_{sd}
                s_subb_u32 s79, s79, 0
                s_bfe_u32 s3, s2, {3 | (1 << 16)}
                s_lshl_b32 s3, s3, 2
                s_add_u32 s3, s3, {sW}
                s_lshl_b32 s3, s3, 13
                v_add_u32 v2, s3, v1
                v_min_u32 v2, .Lend_{sd}-.Lside_{sd}-4, v2
                """)
                O.vm(f"global_load_dword v14, v2, s[78:79]")
            if sd == "y":
                O(f"""
                s_or_b32 s3, s2, {sW}
                s_cmp_lg_u32 s3, 0
                s_cbranch_scc1 .Lc_nononce
                s_memrealtime s[60:61]
                s_waitcnt lgkmcnt(0)
                s_or_b32 s60, s60, 1
                v_mov_b32 v1, s60
                buffer_store_dword v1, off, {SDBG}, 0 sc1
                .Lc_nononce:
                """)
        hooks["c_first"] = c_first
        def t_u(h, sd=sd):
            e = h.e
            if sd == "y":
                e(f"""
                s_lshr_b32 s3, s2, 3
                s_lshl_b32 s3, s3, 1
                s_and_b32 s79, {sW}, 1
                s_add_u32 s3, s3, s79
                s_lshl_b32 s3, s3, 13
                v_lshlrev_b32 v126, 7, v0
                """)
                e.vm(f"buffer_load_dword v127, v126, {STCH}, s3 offen")
            else:
                e(f"""
                v_lshrrev_b32 v126, 4, v0
                v_mul_u32_u24 v126, 3584, v126
                v_and_b32 v127, 15, v0
                v_min_u32 v127, 13, v127
                v_lshl_add_u32 v126, v127, 7, v126
                s_lshr_b32 s3, s2, 3
                s_lshl_b32 s3, s3, 2
                s_add_u32 s3, s3, {sW}
                s_mul_i32 s3, s3, {4*3584}
                """)
                e.vm(f"buffer_load_dword v127, v126, {SWIN}, s3 offen")
        if opt.get("pretouch", 0) == 2:
            hooks[["h_first", "h_s1", "h_s3", "h_issued", "h_s6", "h_s7"][opt.get("tu", 3)]] = t_u
        if stop >= 2:
            import gz2
            gz2.install_hooks(ctx, sd, hooks)
        h = gz1.p1_helper(ctx, sd, hooks)
        c = gz1.p1_compute(ctx, sd, h.thr, hooks)
        if stop >= 2:
            gz2.p2_helper(ctx, sd, h); (gz2.p2_compute16 if opt.get("p2s", 16) == 16 else gz2.p2_compute)(ctx, sd, c, h)
        if stop >= 3:
            import gz3
            gz3.p3_compute(ctx, sd, c, h)
        def expand(st):
            o = []
            for x in st.o:
                if x == "@SRD": o += SRD(sd, st.name)
                else: o.append(x)
            st.o = o
            return st.fixed()
        L += [f".Lside_{sd}:", f"s_cmp_lt_u32 {sWAVE}, 4", f"s_cbranch_scc1 .Lcompute_{sd}"]
        L += expand(h.e) + ["s_endpgm", f".Lcompute_{sd}:"] + expand(c)
        if sd == "y": L += [".Lexit:"]
        L += ["s_endpgm"]
        L += [x.strip() for x in ctx.ool] + [f".Lend_{sd}:"]
        nctx = ctx.n
    body = "\n".join((x.strip() if x.strip().endswith(":") or x.startswith(".") else "  " + x.strip()) for x in L) + "\n"
    txt = HEADER + f"; @launch kernel={NAME} grid=(256,1,1) block=(512,1,1) lds=163840\n"
    if opt.get("p2s", 16) == 16: body = "; XTPERM\n" + body
    txt += '.amdgcn_target "amdgcn-amd-amdhsa--gfx950"\n.text\n' + body + '.section .rodata,"a"\n' + descriptor(NAME)
    return txt

if __name__ == "__main__":
    opt = {}
    for kv in sys.argv[2:]:
        k, v = kv.split("="); opt[k] = int(v)
    open(sys.argv[1], "w").write(gen(opt))
```

```python
import sys, re
src = open(sys.argv[1]).read().split("\n")
groups = sys.argv[3].split(",")
assert len(groups) <= 6
slot = {}
for i, g in enumerate(groups):
    for l in g.split("|"): slot.setdefault(l.lstrip("@"), []).append((i, l.startswith("@")))
out = []; last = None
for ln in src:
    if re.match(r"^(\w+_kernel):", ln):
        out += [ln, "  s_memrealtime s[96:97]", "  s_load_dwordx2 s[92:93], s[0:1], 96", "  v_lshrrev_b32 v1, 6, v0", "  s_nop 0",
                "  v_readfirstlane_b32 s101, v1", "  s_lshl_b32 s100, s2, 3", "  s_add_u32 s101, s101, s100", "  s_lshl_b32 s101, s101, 5",
                f"  s_add_u32 s101, s101, {0x1800000}"]
        out += [f"  s_mov_b32 s{80+2*i}, 0" for i in range(6)]
        if len(sys.argv) > 4: out += ["  s_memtime s[88:89]"]
        continue
    if ln.strip() == ".Lexit:": continue
    if ln.strip() == "s_endpgm":
        out.append("  s_branch .Ltl_tail"); last = len(out); continue
    out.append(ln)
    t = ln.strip()
    if t.endswith(":") and t[:-3] in slot:
        for i, cy in slot[t[:-3]]:
            out.append(f"  {'s_memtime' if cy else 's_memrealtime'} s[{80+2*i}:{81+2*i}]")
t = """.Ltl_tail:
  s_waitcnt vmcnt(0) lgkmcnt(0)
  s_memrealtime s[98:99]
  s_mov_b64 exec, 1
  s_waitcnt lgkmcnt(0)
  v_mov_b32 v1, s98
  v_mov_b32 v2, s80
  v_mov_b32 v3, s82
  v_mov_b32 v4, s84
  v_mov_b32 v5, s86
  v_mov_b32 v6, s88
  v_mov_b32 v7, s90
  v_mov_b32 v8, s96
  s_not_b32 s96, s96
  v_mov_b32 v9, s96
  buffer_atomic_umax v1, off, s[20:23], 0 offset:4 sc1
  buffer_atomic_umax v2, off, s[20:23], 0 offset:8 sc1
  buffer_atomic_umax v3, off, s[20:23], 0 offset:12 sc1
  buffer_atomic_umax v4, off, s[20:23], 0 offset:16 sc1
  buffer_atomic_umax v5, off, s[20:23], 0 offset:20 sc1
  buffer_atomic_umax v6, off, s[20:23], 0 offset:24 sc1
  buffer_atomic_umax v7, off, s[20:23], 0 offset:28 sc1
  buffer_atomic_umax v8, off, s[20:23], 0 offset:32 sc1
  buffer_atomic_umax v9, off, s[20:23], 0 offset:36 sc1
  s_endpgm""".split("\n")
if len(sys.argv) > 4:
    i = t.index("  s_memrealtime s[98:99]")
    t[i:i] = ["  s_memtime s[90:91]"]
    i = t.index("  v_mov_b32 v0, s96")
    t[i:i] = ["  s_sub_u32 s90, s90, s88", "  s_mov_b32 s88, 0"]
out[last:last] = t + [".Lexit:", "  s_endpgm"]
open(sys.argv[2], "w").write("\n".join(out))
```

```python
from gzlib import *

HPOLL, HPUB, HC, HT = 10, 11, 12, 13
CPOLL, CPUB, CC, CT_ = 10, 11, 13, 15
HTAG = 55
AX = 4
TPOS = {0: [0, 1, 2, 3, 4, 5, 6, 7], 1: [16, 17, 0, 1, 2, 3, 4, 5], 2: [6, 7, 8, 9, 10, 11, 16, 17]}
TP7 = {1: [2, 3, 4, 5, 6, 7, 16, 17], 2: [0, 1, 12, 13, 14, 15, 8, 9]}
DUMP = 12 * 8192
XS = [12, 14, 8, 10]
CT2 = MISC + 3072
RTN = MISC + 9216
R_NM, R_R, R_SD = 0, 512, CT2 + 1024 - RTN
ZO = lambda b: (b >> 1)*512 + (b & 1)*128
def M16(acc, a, b, first=False): return f"v_mfma_f32_16x16x32_bf16 {vr(acc,4)}, {vr(a,4)}, {vr(b,4)}, {'0' if first else vr(acc,4)}"
ROT = f"""
    s_lshr_b32 s3, s2, 6
    s_lshl1_add_u32 @R, s3, {sJ}
    s_and_b32 @R, @R, 7
"""

UNI = [0]
def ABSEL(sd):
    if UNI[0]: return f"""
        s_lshr_b32 s3, s2, 1
        s_xor_b32 s3, s3, s2
        s_cmp_eq_u32 {sJ}, 7
        s_cselect_b32 s3, 2, s3
        s_bitcmp1_b32 s3, 1
        """
    if sd == "y": return f"""
        s_cmp_eq_u32 {sJ}, 7
        s_cselect_b32 s3, 2, s2
        s_bitcmp1_b32 s3, 1
        """
    return """
        s_bitcmp0_b32 s2, 1
        """

def SWP(opt, d):
    if not opt.get("swp"): return f"s_mov_b32 {d}, s2" if d != "s2" else ""
    m = {1: 0xF8, 2: 0xB8, 4: 0x38}[opt["swp"]]
    return f"""
    s_and_b32 s3, s2, {m}
    s_cmp_eq_u32 s3, 0x38
    s_cselect_b32 s3, {opt.get("swx", 6)}, 0
    s_xor_b32 {d}, s2, s3
    """

class H:
    def __init__(self, ctx, sd):
        self.ctx = ctx; self.e = Stream(ctx, "h", sd); self.thr = {}
    def trypub(self, n=None):
        e = self.e
        L = self.ctx.trypub(e.nvm if n is None else n, HPUB, HT)
        for x in L[:-1]: e(x)
        e.lds(L[-1], "pub")
    def pub(self, n):
        self.e(f"v_mov_b32 v{HT}, {n}")
        self.e.lds(f"ds_write_b32 v{HPUB}, v{HT}", "pub")
    def pre(self, goff, tag, reg=HPOLL): self.e.lds(f"ds_read_b32 v{HC}, v{reg} offset:{goff}", tag)
    def chk(self, goff, need, tag, reg=HPOLL, n=None):
        self.ctx.check(self.e, HC, reg, goff, need, tag, self.ctx.trypub(self.e.nvm if n is None else n, HPUB, HT))
    def wait(self, goff, need, reg=HPOLL, n=None):
        self.pre(goff, "pc", reg); self.chk(goff, need, "pc", reg, n)
    def pubw(self, val):
        self.e(f"v_mov_b32 v{HT}, {val}")
        self.e.lds(f"ds_write_b32 v{HPUB}, v{HT} offset:{G_PW}", "pub")


def XPAT(d, t):
    return f"""
    v_lshrrev_b32 v{t}, 4, v0
    v_xor_b32 v{d}, v{t}, v0
    v_and_b32 v{d}, 7, v{d}
    v_lshlrev_b32 v{d}, 4, v{d}
    v_lshrrev_b32 v{t}, 5, v0
    v_lshl_add_u32 v{d}, v{t}, 13, v{d}
    v_bfe_u32 v{t}, v0, 3, 2
    v_lshl_add_u32 v{d}, v{t}, 10, v{d}
    v_xor_b32 v{d+1}, 64, v{d}
    v_add_u32 v{d+2}, {4096-2048}, v{d}
    v_add_u32 v{d+3}, {16384+4096-3072}, v{d+1}
    v_add_u32 v{d+1}, {16384-1024}, v{d+1}
    """
G_PX = G_PD + 1024
XB = 8 * 8192

def p1_helper(ctx, sd, hooks):
    opt = ctx.opt
    h = H(ctx, sd); e = h.e; thr = h.thr
    Y = sd == "y"
    VX, VXX, VW = 4, 44, 8
    NON = 52
    sKB = "s47"
    hk = lambda nm: hooks.get(nm, lambda h: None)(h)
    if opt.get("hprio0"): e(f"s_setprio {opt['hprio0']}")
    e(XPAT(VXX, 1))
    e(f"""
    v_lshrrev_b32 v1, 3, v0
    v_and_b32 v2, 7, v0
    v_bfe_u32 v3, v0, 4, 1
    v_lshlrev_b32 v3, 2, v3
    v_xor_b32 v3, v2, v3
    v_lshlrev_b32 v3, 4, v3
    v_mul_u32_u24 v{VW}, 3584, v1
    v_xor_b32 v{VW+1}, 32, v3
    v_add_u32 v{VW+1}, v{VW}, v{VW+1}
    v_add_u32 v{VW+1}, {8*3584-1024}, v{VW+1}
    v_add_u32 v{VW}, v{VW}, v3
    s_min_u32 s78, {sJ}, 6          ; jm
    s_mul_i32 s77, {sW}, {16*3584}
    v_and_b32 v3, 3, v0
    v_mul_u32_u24 v3, 260, v3
    v_add_u32 v{HPOLL}, {MISC}, v3
    s_lshl_b32 s3, {sW}, 8
    s_add_u32 s3, s3, {MISC}
    v_lshl_add_u32 v{HPUB}, v0, 2, s3
    v_mov_b32 v{HT}, 0
    """)
    e.lds(f"ds_write_b32 v{HPUB}, v{HT}", "z")
    e.lds(f"ds_write_b32 v{HPUB}, v{HT} offset:{G_PW}", "z")
    e(ROT.replace("@R", "s76") if not opt.get("norot1") else "s_mov_b32 s76, 0")
    e(f"""
    s_lshl_b32 s79, s78, 7
    s_add_u32 s79, s79, s77
    s_lshl2_add_u32 s77, {sRB}, {sW}
    @SRD
    {"s_cselect_b32 s44, 0, %d" % (7*128) if UNI[0] else ""}
    s_add_u32 s44, s79, {"s44" if UNI[0] else (0 if Y else 7*128)}     ; z1 base
    s_add_u32 s46, s44, 1792                    ; z2 base
    s_lshl_b32 s45, s77, 15
    s_lshl_b32 s48, {sW}, 11        ; e*2048
    s_lshl_b32 s49, {sW}, 12        ; e*4096
    """)
    e.lq = []
    e.slabel(".Lh_srd")
    CAP = opt.get("cap", 16)
    want = []
    chain = [True]
    def credit(n):
        if not chain[0]: return
        done = e.nvm - (CAP - n)
        if done <= 0: return
        e.wc(f"vmcnt({CAP - n})")
        k = [t for t in want if t[0] <= done]
        if k:
            for t in k: want.remove(t)
            L = [x.replace("s79", "s65").replace("s3", "s64") for x in ctx.trypub(e.nvm, HPUB, HT)]
            for x in L[:-1]: e(x)
            e.lds(L[-1], "pub")
            for t in k:
                if t[1]: e.slabel(t[1])
    def kb(u):
        e(f"s_add_u32 {sKB}, s76, {u}")
        e(f"s_and_b32 {sKB}, {sKB}, 7")
    def dmax(u):
        kb(u)
        e(f"s_lshl_b32 s3, {sKB}, 7")
        e(f"s_add_u32 m0, s49, {XS[u&3]*8192}")
        e(f"s_add_u32 s3, s3, s45")
        for q in range(4):
            if not q & 1: credit(2)
            e.vm(f"buffer_load_dwordx4 v{VXX+q}, {SX}, s3 offen{' offset:%d' % (q*1024) if q else ''} lds")
        thr[("x", u)] = e.nvm
    def dma(U, u):
        wd = U == 1
        kb(u)
        e(f"s_mul_i32 s3, {sKB}, {128 if wd else 64*3584}")
        e(f"s_add_u32 m0, s48, {TPOS[U][u]*8192}")
        e(f"s_add_u32 s3, s3, {'s46' if U == 0 else ('s77' if U == 1 else 's44')}")
        V = VX if wd else VW; S = SWD if wd else SWIN
        credit(2)
        e.vm(f"buffer_load_dwordx4 v{V}, {S}, s3 offen lds")
        e.vm(f"buffer_load_dwordx4 v{V+1}, {S}, s3 offen offset:1024 lds", (U, u))
        thr[(U, u)] = e.nvm
    X_ = lambda s_: ("x", s_)
    todo = [X_(0), (0, 0), X_(1), (0, 1), X_(2), (0, 2), X_(3), (0, 3), (0, 4), -1, X_(4), (0, 5), -2, X_(5), (0, 6),
            -3, X_(6), (0, 7), -4, X_(7), (1, 0), (1, 1), "nonce", 2, (1, 2), (1, 3), 4, (1, 4), (1, 5), 6, (1, 6), (1, 7),
            7, (2, 0), (2, 2), (2, 3), 8, (2, 1), (2, 4), (2, 5)]
    if opt.get("tch") == 1: todo.insert(todo.index((1, 7)) + 1, "tch")
    PUBS = {(1, 1), (1, 4), (1, 7), (2, 1), (2, 5)}
    def step():
        it = todo.pop(0)
        if isinstance(it, int):
            if it > 0: h.wait(G_PC, it)
            else: h.wait(G_PX, -it, reg=HPUB)
            return
        if it == "tch":
            e.lwaitall()
            e(f"s_cmp_eq_u32 {sJ}, 7")
            e(f"s_cbranch_scc1 .Lh_tch_@S")
            h.tch_n = e.nvm
            return
        if it == "nonce": e.vm(f"buffer_load_dword v{NON}, off, {SDBG}, 0 sc1", "nonce"); return
        if it[0] == "x": dmax(it[1])
        else: dma(*it)
        u = it[1]
        if it[0] in ("x", 0) and ("x", u) in thr and (0, u) in thr:
            thr[(0, u)] = e.nvm; want.append((e.nvm, f".Lh_s{u}"))
        if it in PUBS: want.append((e.nvm, None))
    hk("h_first")
    V7 = opt.get("tch") == 2
    if UNI[0]:
        e("s_and_b32 s3, s2, 0x3C")
        e("s_cmp_eq_u32 s3, 0x3C")
        e(f"s_cbranch_scc1 .Lh_issued_@S")
    elif V7 and not Y:
        e(f"s_cmp_eq_u32 {sJ}, 7")
        e(f"s_cbranch_scc1 .Lh_issued_@S")
    while e.nvm + (4 if todo[0][0] == "x" else 2) <= CAP: step()
    e.slabel(".Lh_issued")
    e(f"""
    v_lshrrev_b32 v3, 4, v0
    v_xor_b32 v3, v2, v3
    v_lshlrev_b32 v3, 4, v3
    v_lshl_add_u32 v{VX}, v1, 10, v3
    v_xor_b32 v{VX+1}, 64, v{VX}
    v_add_u32 v{VX+1}, {8*1024-1024}, v{VX+1}
    s_lshl2_add_u32 s77, {sJ}, {sW}
    s_lshl_b32 s77, s77, 14
    """)
    ZA = 64
    NM, R, SD, K0, K1 = 14, 16, 18, 20, 22
    CSV = 24
    SQP = 40
    S_, TAG, Q_, S1, Q1 = 54, HTAG, 56, 50, 51
    DA, PA, SCW, SCR, GA, CA, RA = 57, 58, 59, 60, 61, 62, 63
    TM = 100
    ZP = 108
    PL = 128
    setup2 = f"""
    s_lshl_b32 s3, {sW}, 13
    s_add_u32 s3, s3, {DUMP}
    v_lshl_add_u32 v{DA}, v0, 4, s3
    v_and_b32 v1, 15, v0                        ; n
    v_lshrrev_b32 v2, 4, v0                     ; G
    v_lshrrev_b32 v3, 5, v0
    v_lshl_add_u32 v3, v3, 4, v1
    v_lshlrev_b32 v{PA}, 4, v3
    v_and_b32 v3, 1, v2
    v_lshl_add_u32 v{PA}, v3, 3, v{PA}
    v_and_b32 v{RA}, 12, v0
    v_add_u32 v{RA}, v{RA}, v1
    ; scratch write: tok*128 + (((G>>1) ^ ((tok>>1)&7))*16 + 8(G&1) , ^ phys*32 ; rt flips bit1 of (tok>>1) -> ^32, +512
    v_lshrrev_b32 v{SCW}, 1, v{RA}
    v_lshrrev_b32 v{SCR}, 5, v0
    v_xor_b32 v{SCW}, v{SCW}, v{SCR}
    v_and_b32 v{SCW}, 7, v{SCW}
    v_lshlrev_b32 v{SCW}, 4, v{SCW}
    v_lshl_add_u32 v{SCW}, v3, 3, v{SCW}
    v_lshl_add_u32 v{SCW}, v{RA}, 7, v{SCW}
    s_lshl_b32 s79, {sW}, 5
    s_add_u32 s79, s79, s3
    v_xor_b32 v{SCW}, s79, v{SCW}
    s_lshl_b32 s79, {sW}, 7
    s_add_u32 s79, s79, {RTN}
    v_lshl_add_u32 v{RA}, v{RA}, 2, s79
    s_lshl_b32 s79, {sW}, 6
    s_xor_b32 s79, s79, {CT2 + 128}
    v_lshl_add_u32 v{CA}, v2, 4, s79
    ; scratch tr read: row = 8G + r (+4) ; chunk = (2b + (c>>1)) ^ ((row>>1)&7) ; +8(c&1)
    v_bfe_u32 v3, v0, 2, 2
    v_lshl_add_u32 v1, v2, 3, v3                ; row
    v_bfe_u32 v3, v1, 1, 3
    v_bfe_u32 v{SCR}, v0, 1, 1
    v_xor_b32 v3, v3, v{SCR}
    v_lshlrev_b32 v3, 4, v3
    v_lshl_add_u32 v3, v1, 7, v3
    v_and_b32 v1, 1, v0
    v_lshl_add_u32 v3, v1, 3, v3
    v_add_u32 v{SCR}, s3, v3
    v_mul_u32_u24 v1, {XP}, v2
    v_and_b32 v2, 3, v0
    v_bfe_u32 v3, v0, 2, 1
    v_lshl_or_b32 v2, v3, 4, v2
    v_bfe_u32 v3, v0, 3, 1
    v_lshl_or_b32 v2, v3, 2, v2
    v_lshl_add_u32 v{GA}, v2, 4, v1
    s_lshl_b32 s61, {sRB}, 2
    s_add_u32 s61, s61, {sW}
    s_lshl_b32 s58, s61, 13
    s_add_u32 s58, s58, {WS_ST}
    s_add_u32 s59, s58, 4096
    {"s_bitcmp1_b32 s2, 2" if UNI[0] else ""}
    {"s_cselect_b32 s3, 7, 0" if UNI[0] else ""}
    s_add_u32 s78, s78, {"s3" if UNI[0] else (0 if Y else 7)}         ; zi
    s_lshl_b32 s60, s78, 9
    s_add_u32 s60, s60, s58
    ; flag
    s_lshl_b32 s62, s61, 2
    s_lshl_b32 s3, s78, 8
    s_add_u32 s62, s62, s3
    s_add_u32 s62, s62, {WS_F + 16*256}
    s_mul_i32 s61, s61, {4*XP}
    s_lshl_b32 s3, s78, 10
    s_add_u32 s61, s61, s3
    s_add_u32 s61, s61, {WS_XT + 1024*16}
    v_mov_b32 v{S_}, 0
    v_mov_b32 v{Q_}, 0
    v_mov_b32 v{S1}, 0
    v_mov_b32 v{Q1}, 0
    v_add_u32 v{TM}, {R_SD & 0xffffffff}, v{RA}
    v_xor_b32 v{TM+1}, 64, v{CA}
    """
    assert (CT2 & 255) == 0
    e(setup2)
    hk("h_setup")
    e("s_barrier")
    if V7:
        assert opt.get("norot1") and not e.lq
        e(f"s_cmp_eq_u32 {sJ}, 7")
        e(f"s_cbranch_scc1 {'.Lh_j7' if UNI[0] else ('.Lh_v7' if Y else '.Lh_tch_g')}")
        if UNI[0] and Y: ctx.ool += [".Lh_j7:", "s_bitcmp1_b32 s2, 2", "s_cbranch_scc1 .Lh_tch_g"]
        h.tch_n = e.nvm
    if V7 and Y:
        h2 = H(ctx, sd); e2 = h2.e; e2.nvm = e.nvm; t2 = h.thr7 = {k: v for k, v in thr.items() if k[0] == "x"}
        e2(".Lh_v7:")
        for it in [X_(2), X_(3), (1, 0), (1, 1), -1, X_(4), (1, 2), -2, X_(5), (1, 3), -3, X_(6), (1, 4), -4, X_(7), (1, 5), (1, 6), (1, 7),
                   (2, 0), (2, 1), 5, (2, 2), (2, 3), 6, (2, 4), (2, 5), 7, (2, 6), (2, 7)]:
            if isinstance(it, int):
                h2.trypub()
                if it > 0: h2.wait(G_PC, it)
                else: h2.wait(G_PX, -it, reg=HPUB)
                continue
            if it in t2: continue
            u = it[1]
            if it[0] == "x":
                e2(f"s_add_u32 m0, s49, {XS[u&3]*8192}")
                e2(f"s_add_u32 s3, s45, {u*128}")
                for q in range(4): e2.vm(f"buffer_load_dwordx4 v{VXX+q}, {SX}, s3 offen{' offset:%d' % (q*1024) if q else ''} lds")
            else:
                e2(f"s_add_u32 m0, s48, {TP7[it[0]][u]*8192}")
                e2(f"s_add_u32 s3, s77, {u*128}")
                S_2 = SWD if it[0] == 1 else STCH
                e2.vm(f"buffer_load_dwordx4 v{VX}, {S_2}, s3 offen lds")
                e2.vm(f"buffer_load_dwordx4 v{VX+1}, {S_2}, s3 offen offset:1024 lds")
            t2[it] = e2.nvm
        h2.wait(G_PD, 1)
        e2.lwaitall()
        e2("s_branch .Lh_tch_y")
        h.tch_n = e2.nvm
        ctx.ool += e2.fixed()
    while todo: step()
    chain[0] = False
    h.trypub()
    if UNI[0]: e("@SPLIT")
    hk("h_t3")
    h.wait(G_PD, 2)
    e.slabel(".Lh_dump")
    if opt.get("hprio"): e(f"s_setprio {opt['hprio']}")
    e.lds(f"ds_read2_b32 {vr(R,2)}, v{RA} offset0:{R_R//4} offset1:{R_R//4+4}", "rt")
    e.lds(f"ds_read2_b32 {vr(NM,2)}, v{RA} offset0:0 offset1:4", "rt")
    e.lds(f"ds_read2_b32 {vr(SD,2)}, v{TM} offset0:0 offset1:4", "rt")
    for q in range(4, 8):
        if not q & 1:
            c = q >> 1
            e.lds(f"ds_read_b128 {vr(CSV+4*c,4)}, v{CA if c == 2 else TM+1}", ("cs", c))
        e.lds(f"ds_read_b128 {vr(ZA+4*q,4)}, v{DA} offset:{(q-4)*1024}", ("d", q))
    e.lwait("rt")
    for rt in range(2):
        e(f"""
        v_mul_f32 v1, v{R+rt}, v{R+rt}
        v_mul_f32 v{K0+rt}, {C0}, v{R+rt}
        v_mul_f32 v1, v1, v{R+rt}
        v_mul_f32 v{K1+rt}, {C1}, v1
        """)
    def gelu(q):
        rt = q & 1; c = q >> 1
        tm = [TM + (q & 1)*4 + k for k in range(4)]
        u = [ZA + 4*q + k for k in range(4)]
        e.lwait(("d", q))
        for k in range(4): e(f"v_fma_f32 v{u[k]}, v{NM+rt}, v{CSV+4*c+k}, v{u[k]}")
        for k in range(4): e(f"v_mul_f32 v{tm[k]}, v{u[k]}, v{u[k]}")
        for k in range(4): e(f"v_fma_f32 v{tm[k]}, v{K1+rt}, v{tm[k]}, v{K0+rt}")
        for k in range(4): e(f"v_mul_f32 v{tm[k]}, v{u[k]}, v{tm[k]}")
        for k in range(4): e(f"v_exp_f32 v{tm[k]}, v{tm[k]}")
        for k in range(4): e(f"v_fma_f32 v{tm[k]}, v{tm[k]}, v{SD+rt}, v{SD+rt}")
        for k in range(4): e(f"v_rcp_f32 v{tm[k]}, v{tm[k]}")
        for k in range(4): e(f"v_mul_f32 v{u[k]}, v{u[k]}, v{tm[k]}")
        for k in range(4):
            e(f"v_add_f32 v{S1 if rt else S_}, v{S1 if rt else S_}, v{u[k]}")
            e(f"v_fma_f32 v{Q1 if rt else Q_}, v{u[k]}, v{u[k]}, v{Q1 if rt else Q_}")
    e.vwait("nonce")
    ctx.nonce(e, NON)
    e(f"""
    v_mov_b32 v{TAG}, {sNONCE}
    v_add_u32 v{NON}, {G_PD}, v{HPUB}
    """)
    for q in range(4, 8):
        gelu(q)
        if q == 5: h.trypub()
    if opt.get("g1ov"):
        h.wait(G_PC, 9)
        dma(2, 6); dma(2, 7)
    h.wait(0, 3, reg=NON)
    e.lds(f"ds_read_b128 {vr(SQP,4)}, v{DA} offset:6144", "sq")
    for k in range(2): e.lds(f"ds_read_b128 {vr(ZP+4*k,4)}, v{DA} offset:{4096+k*1024}", "zp")
    e.lwait("sq")
    e(f"""
    v_add_f32 v{S_}, v{S_}, v{SQP}
    v_add_f32 v{S1}, v{S1}, v{SQP+2}
    v_add_f32 v{Q_}, v{Q_}, v{SQP+1}
    v_add_f32 v{Q1}, v{Q1}, v{SQP+3}
    v_permlane32_swap_b32 v{S_}, v{S1}
    v_permlane32_swap_b32 v{Q_}, v{Q1}
    v_add_f32 v{S_}, v{S_}, v{S1}
    v_add_f32 v{Q_}, v{Q_}, v{Q1}
    v_permlane16_swap_b32 v{S_}, v{Q_}
    v_add_f32 v{S_}, v{S_}, v{Q_}
    """)
    e.vm(f"buffer_store_dwordx2 v[{S_}:{TAG}], v{PA}, {SWS}, s60 offen sc1", "gr")
    e.slabel(".Lh_gran")
    hk("h_gran")
    h.trypub()
    if not opt.get("g1ov"): h.pre(G_PC, "pc")
    e.lwait("zp")
    for q in range(8):
        for k in range(2):
            a, b = ZA + 4*q + 2*k, ZA + 4*q + 2*k + 1
            p = b
            if q < 4: p = ZP + 2*q + k
            else: e(f"v_cvt_pk_bf16_f32 v{b}, v{a}, v{b}")
            e(f"v_lshlrev_b32 v{a}, 16, v{p}")
            e(f"v_and_b32 v{b}, 0xffff0000, v{p}")
    e(f"v_lshlrev_b32 v{PA}, 4, v0")
    if not opt.get("g1ov"):
        h.chk(G_PC, 9, "pc")
        dma(2, 6); dma(2, 7)
    else: h.trypub()
    hk("h_prepoll")
    e(f"v_mov_b32 v{HT}, {e.nvm}")
    e.lwaitall()
    e.slabel(".Lh_poll")
    for q in range(7):
        e(f"buffer_load_dwordx4 {vr(PL+4*q,4)}, v{PA}, {SWS}, {'s58' if q < 4 else 's59'} offen offset:{(q&3)*1024} " + ("sc0" if opt.get("stl") and (q < 3 if Y else q > 3) else "sc1"))
    if opt.get("pub7", 1):
        e(f"s_waitcnt vmcnt(7)")
        e(f"ds_write_b32 v{HPUB}, v{HT}")
    for q in range(7):
        e(f"s_waitcnt vmcnt({6-q})")
        b = PL + 4*q
        if q == 0:
            if not opt.get("pub7", 1): e(f"ds_write_b32 v{HPUB}, v{HT}")
            e(f"v_min_u32 v1, v{b+1}, v{b+3}")
            e(f"v_max_u32 v2, v{b+1}, v{b+3}")
        else:
            e(f"v_min3_u32 v1, v1, v{b+1}, v{b+3}")
            e(f"v_max3_u32 v2, v2, v{b+1}, v{b+3}")
            e(f"v_add_f32 v{PL}, v{PL}, v{b}")
            e(f"v_add_f32 v{PL+2}, v{PL+2}, v{b+2}")
    A, B = PL, PL+2
    e(f"""
    v_cmp_ne_u32 vcc, {sNONCE}, v1
    v_cmp_ne_u32 s[64:65], {sNONCE}, v2
    s_or_b64 vcc, vcc, s[64:65]
    s_cbranch_scc0 .Lh_poll_ok_@S
    s_cmp_eq_u32 {sBUD}, 0
    s_cbranch_scc1 .Lh_poll_ok_@S
    s_sub_u32 {sBUD}, {sBUD}, 16
    s_max_i32 {sBUD}, {sBUD}, 0
    s_sleep {opt.get("slph", 0)}
    s_branch .Lh_poll_@S
    .Lh_poll_ok_@S:
    s_waitcnt lgkmcnt(0)
    """)
    hk("h_postpoll")
    e(f"""
    v_mov_b32 v1, v{A}
    v_mov_b32 v2, v{B}
    v_permlane32_swap_b32 v{A}, v1
    v_permlane32_swap_b32 v{B}, v2
    v_add_f32 v{A}, v{A}, v1
    v_add_f32 v{B}, v{B}, v2
    v_mul_f32 v{A}, {f2u(1.0/896)}, v{A}
    v_mul_f32 v{B}, {f2u(1.0/896)}, v{B}
    v_fma_f32 v{B}, -v{A}, v{A}, v{B}
    v_cvt_pk_bf16_f32 v{A}, v{A}, v{B}
    v_and_b32 v{B}, 0xffff0000, v{A}
    v_add_f32 v{B}, {EPS}, v{B}
    v_cvt_pk_bf16_f32 v{B}, v{B}, v{B}
    v_lshlrev_b32 v{B}, 16, v{B}
    v_sqrt_f32 v{B}, v{B}
    v_lshlrev_b32 v{A}, 16, v{A}
    v_cvt_pk_bf16_f32 v{B}, v{B}, v{B}
    v_lshlrev_b32 v{B}, 16, v{B}
    v_rcp_f32 v{B}, v{B}
    v_mul_f32 v{A}, -v{A}, v{B}
    v_mov_b32 v{B+1}, v{B}
    v_mov_b32 v{A+1}, v{A}
    v_permlane16_swap_b32 v{B}, v{B+1}
    v_permlane16_swap_b32 v{A}, v{A+1}
    """)
    for q in range(8):
        c = q >> 1; rt = q & 1
        for k in range(4):
            z = ZA + 4*q + k
            e(f"v_fma_f32 v{z}, v{z}, v{B+rt}, v{A+rt}")
        e(f"v_cvt_pk_bf16_f32 v{ZP+2*q}, v{ZA+4*q}, v{ZA+4*q+1}")
        e(f"v_cvt_pk_bf16_f32 v{ZP+2*q+1}, v{ZA+4*q+2}, v{ZA+4*q+3}")
        x = (c*32) ^ (32 if rt else 0)
        if x: e(f"v_xor_b32 v{TM+(q&3)}, {x}, v{SCW}")
        e.lds(f"ds_write_b64 v{TM+(q&3) if x else SCW}, {vr(ZP+2*q,2)}" + (" offset:512" if rt else ""), "sw")
    for b in range(4):
        e(f"v_xor_b32 v{TM+4+2*(b&1)}, {b*32}, v{SCR}")
        e(f"v_xor_b32 v{TM+5+2*(b&1)}, {(b*32) ^ 32}, v{SCR}")
        e.lds(f"ds_read_b64_tr_b16 {vr(ZA+8*b,2)}, v{TM+4+2*(b&1)}", ("tr", b))
        e.lds(f"ds_read_b64_tr_b16 {vr(ZA+8*b+2,2)}, v{TM+5+2*(b&1)} offset:512", ("tr", b))
    for b in range(4):
        e.lwait(("tr", b))
        e.vm(f"buffer_store_dwordx4 {vr(ZA+8*b,4)}, v{GA}, {SWS}, s61 offen offset:{ZO(b)} sc1", "zst")
    e.slabel(".Lh_zst")
    h.pubw(4)
    hk("h_preflag")
    e.vwait("zst")
    e("s_mov_b64 exec, 1")
    e.vm(f"buffer_store_dword v{TAG}, off, {SWS}, s62 sc1")
    e("s_mov_b64 exec, -1")
    if opt.get("hprio"): e("s_setprio 0")
    e.slabel(".Lh_p1end")
    if opt.get("tch"):
        e.lwaitall()
        e.slabel(".Lh_tjoin")
        h.tch_join = e.nvm
        if V7 and Y: h.thr7["join"] = e.nvm
    return h


XA, GA, RTA, CTW, CTR, VD = 4, 6, 7, 8, 9, 12
AD = 16
XRD, XWR = AD + 4, AD + 5
ONES = 24
CS = 28
FIFO = 32; NF = 8
ACC0, ACC1, XF = 96, 64, 128
CTAG = 12
ZD = 192

def p1_compute(ctx, sd, thr, hooks, thr7=None):
    opt = ctx.opt
    O = Stream(ctx, "c", sd)
    Y = sd == "y"
    SQ, SM = ACC1 + 16, ACC1 + 24
    sXB, sXK = "s76", "s77"
    O(f"""
    v_and_b32 v1, 15, v0            ; n
    v_lshrrev_b32 v2, 4, v0         ; G
    v_and_b32 v3, 12, v0
    v_add_u32 v3, v3, v1
    v_and_b32 v14, 3, v0
    v_mul_u32_u24 v14, 260, v14
    v_add_u32 v{CPOLL}, {MISC}, v14
    s_lshl_b32 s3, {sW}, 8
    s_add_u32 s3, s3, {MISC+G_PC}
    v_lshl_add_u32 v{CPUB}, v0, 2, s3
    v_mov_b32 v{CT_}, 0
    """)
    O.lds(f"ds_write_b32 v{CPUB}, v{CT_}", "z")
    O.lds(f"ds_write_b32 v{CPUB}, v{CT_} offset:{G_PD-G_PC}", "z")
    O.lds(f"ds_write_b32 v{CPUB}, v{CT_} offset:{G_PX-G_PC}", "z")
    O("@SRD")
    O.lq = []
    O("s_barrier")
    O.slabel(".Lc_srd")
    V7 = opt.get("tch") == 2
    if UNI[0]:
        O("s_and_b32 s3, s2, 0x3C")
        O("s_cmp_eq_u32 s3, 0x3C")
        O(f"s_cbranch_scc1 .Lc2_skip")
    elif V7 and not Y:
        O(f"s_cmp_eq_u32 {sJ}, 7")
        O(f"s_cbranch_scc1 .Lc2_skip")
    def XR(s, kk, rt): return XF + ((s*2 + kk)*2 + rt)*4
    TRPAT = lambda base: f"""
    v_bfe_u32 v{AD+1}, v0, 2, 2         ; r
    v_lshrrev_b32 v{AD}, 4, v0
    v_lshl_add_u32 v{AD+1}, v{AD}, 3, v{AD+1}
    v_lshlrev_b32 v{AD+1}, 7, v{AD+1}   ; row*128
    v_bfe_u32 v{AD}, v0, 3, 1           ; bit1(r)
    v_lshl_or_b32 v{AD+1}, v{AD}, 6, v{AD+1}
    v_bfe_u32 v{AD}, v0, 4, 1           ; G&1
    v_lshl_or_b32 v{AD+1}, v{AD}, 5, v{AD+1}
    v_and_b32 v{AD}, 3, v0
    v_lshl_or_b32 v{AD+1}, v{AD}, 3, v{AD+1}
    s_lshl_b32 s3, {sW}, 5
    s_add_u32 s3, s3, {base}
    v_xor_b32 v{AD}, s3, v{AD+1}
    v_xor_b32 v{AD+1}, 32, v{AD}
    v_xor_b32 v{AD+2}, 64, v{AD}
    v_xor_b32 v{AD+3}, 96, v{AD}
    """
    O(TRPAT(0))
    O(f"""
    v_lshrrev_b32 v14, 1, v1
    v_xor_b32 v14, v14, v2
    v_lshlrev_b32 v14, 4, v14
    v_lshl_add_u32 v14, v1, 7, v14
    s_lshl_b32 s3, {sW}, 12
    s_add_u32 s3, s3, {XB}
    v_add_u32 v{XRD}, s3, v14
    v_xor_b32 v{XRD+1}, 64, v{XRD}
    v_mov_b32 v{ONES}, 0x3f803f80
    v_mov_b32 v{ONES+1}, 0x3f803f80
    v_mov_b32 v{ONES+2}, 0x3f803f80
    v_mov_b32 v{ONES+3}, 0x3f803f80
    s_lshl_b32 s3, {sW}, 13
    s_add_u32 s3, s3, {DUMP}
    v_lshl_add_u32 v{VD}, v0, 4, s3
    s_lshl_b32 s3, {sW}, 6
    s_add_u32 s3, s3, {CT2}
    v_lshl_add_u32 v{CTW}, v2, 4, s3
    v_lshl_add_u32 v{CTR}, v1, 2, s3
    v_lshrrev_b32 v14, 5, v0
    v_lshl_add_u32 v14, v14, 2, v3
    s_lshl_b32 s3, {sW}, 7
    s_add_u32 s52, s3, {RTN}
    v_lshl_add_u32 v{RTA}, v14, 2, s52
    s_mov_b32 s44, 0xAAAAAAAA
    s_mov_b32 s45, 0xAAAAAAAA
    s_mov_b32 s46, 0xCCCCCCCC
    s_mov_b32 s47, 0xCCCCCCCC
    s_mov_b32 s62, 0x00F0000F
    s_mov_b32 s63, 0xF0000F00
    s_mov_b32 s64, 0
    s_mov_b32 s65, -1
    s_lshl2_add_u32 s54, {sRB}, {sW}        ; 4rb+w
    """)
    SO = ["s48", "s49", "s50", "s51"]
    SZ = ["s66", "s67", "s68", "s69"]
    O(f"""
    v_mul_u32_u24 v{GA}, {XP}, v2
    v_and_b32 v14, 3, v0
    v_lshl_add_u32 v{GA}, v14, 4, v{GA}
    v_bfe_u32 v14, v0, 2, 1
    v_lshl_add_u32 v{GA}, v14, 8, v{GA}
    v_bfe_u32 v14, v0, 3, 1
    v_lshl_add_u32 v{GA}, v14, 6, v{GA}
    s_lshl_b32 s57, s54, 2
    s_lshl_b32 s3, {sJ}, 8
    s_add_u32 s3, s57, s3
    s_add_u32 s56, s3, {WS_F + (0 if Y or opt.get("absw") else 8*256)}
    s_min_u32 s53, {sJ}, 6
    {"s_cmp_eq_u32 %s, 7" % sJ if opt.get("tch") else ""}
    {"s_cselect_b32 s53, %d, s53" % (14 if Y or UNI[0] else 8) if opt.get("tch") else ""}
    {"s_bitcmp1_b32 s2, 2" if UNI[0] else ""}
    {"s_cselect_b32 s3, 7, 0" if UNI[0] else ""}
    {"s_add_u32 s53, s53, s3" if UNI[0] else ""}
    s_lshl_b32 s3, s53, 8
    s_add_u32 s57, s57, s3
    s_add_u32 s57, s57, {WS_F + (30 if Y or UNI[0] else 37)*256}
    s_lshl_b32 s53, s53, 18         ; 8jm*32768
    s_lshl_b32 s3, s54, 9           ; (128rb+32w)*16
    s_add_u32 s53, s53, s3
    s_add_u32 s53, s53, {WS_Z1 + (0 if Y or UNI[0] else 7*8*32768)}
    s_lshl_b32 s3, {sW}, 16
    """)
    for c in range(4):
        O(f"s_xor_b32 {SZ[c]}, s3, {c*65536}")
        O(f"s_add_u32 {SZ[c]}, {SZ[c]}, s53")
    O(f"""
    s_mul_i32 s54, s54, {4*XP}
    s_lshl_b32 s3, {sJ}, 10         ; f0*16 = 64jj*16
    s_add_u32 s54, s54, s3
    s_add_u32 s54, s54, {0 if Y or opt.get("absw") else 512*16}
    {ABSEL(sd) if opt.get("absw") else ""}
    {"s_cselect_b32 s3, 0, %d" % (8*256) if opt.get("absw") else ""}
    {"s_add_u32 s56, s56, s3" if opt.get("absw") else ""}
    {"s_lshl2_add_u32 s54, s3, s54" if opt.get("absw") else ""}
    s_and_b32 s3, {sW}, 1
    s_lshl_b32 s3, s3, 7
    s_and_b32 s55, {sW}, 2
    s_lshl_b32 s55, s55, 8
    s_or_b32 s3, s3, s55            ; ZO(w)
    """)
    for c in range(4):
        O(f"s_xor_b32 {SO[c]}, s3, {ZO(c)}")
        O(f"s_add_u32 {SO[c]}, {SO[c]}, s54")
    O("v_lshlrev_b32 v1, 7, v0")
    hooks.get("c_first", lambda O: None)(O)
    hooks.get("c_start", lambda O: None)(O)
    if opt.get("prio"): O(f"s_setprio {opt['prio']}")
    if V7 and (Y or UNI[0]):
        O(f"s_cmp_eq_u32 {sJ}, 7")
        O(f"s_cbranch_scc1 .Lc_v7")
        if Y: v7_compute(ctx, thr7, hooks, SO)
    S = Sched(ctx, O, NF, FIFO)
    ad = [AddrReg(AD + k, 0) for k in range(8)]
    PD = opt.get("pred", 3)
    def CHK(name, goff, need):
        S.X(name, lambda: (ctx.check(O, CC, CPOLL, goff, need, ("pre", name)), O.slabel(".Lc_" + name)))
        S.main[-1]["chk"] = True
        S.insert_before(name, PD, dict(kind="x", fn=lambda: O.lds(f"ds_read_b32 v{CC}, v{CPOLL} offset:{goff}", ("pre", name)),
                                       frags=[], marks=[], name="P" + name))
    last_pub = {}
    def pub(val, off=0):
        assert val > last_pub.get(off, 0), (val, off); last_pub[off] = val
        O(f"v_mov_b32 v{CT_}, {val}")
        O.lds(f"ds_write_b32 v{CPUB}, v{CT_}" + (f" offset:{off}" if off else ""), "pub")
        return 1
    def PUBL(val): S.load(("pub", val), lambda: pub(val), None)
    state = dict(pat=0, nld=[0, 0, 0])
    def puball(U, val, off=0):
        assert state["nld"][U] == 64, state
        pub(val, off)
    def ld_w(U, u, kk, c, gate):
        sl = S.newslot(); f = FIFO + 4*sl; tag = (U, u, kk, c)
        def fn():
            state["nld"][U] += 1
            if U == 1:
                if state["pat"] == 0:
                    b = TPOS[1][0]*8192
                    O(f"""
                    v_and_b32 v{AD+2}, 15, v0
                    v_lshrrev_b32 v{AD}, 1, v{AD+2}
                    v_lshrrev_b32 v{AD+1}, 4, v0
                    v_xor_b32 v{AD}, v{AD}, v{AD+1}
                    v_lshlrev_b32 v{AD}, 4, v{AD}
                    v_lshl_add_u32 v{AD}, v{AD+2}, 7, v{AD}
                    s_lshl_b32 s3, {sW}, 11
                    s_add_u32 s3, s3, {b}
                    v_add_u32 v{AD}, s3, v{AD}
                    """)
                    for k in range(8):
                        if k: O(f"v_xor_b32 v{AD+k}, {(k&3)*2048 + (k>>2)*64}, v{AD}")
                        ad[k].base = b
                    state["pat"] = 1
                k = c + 4*kk
                o = ad[k].off(O, TPOS[U][u]*8192)
                O.lds(f"ds_read_b128 {vr(f,4)}, v{AD+k} offset:{o}", tag); return 1
            if U == 2 and state["pat"] == 1:
                b = TPOS[2][0]*8192
                O(TRPAT(b))
                for k in range(4): ad[k].base = b
                state["pat"] = 2
            p = TPOS[U][u] * 8192 + kk*4096
            o = ad[c].off(O, p, 512)
            O.lds(f"ds_read_b64_tr_b16 {vr(f,2)}, v{AD+c} offset:{o}", tag)
            O.lds(f"ds_read_b64_tr_b16 {vr(f+2,2)}, v{AD+c} offset:{o+512}", tag); return 2
        S.load(tag, fn, gate, sl)
        return f, tag
    def ld_x(s, gate, qs=range(4)):
        for q in qs:
            kk, rt = q >> 1, q & 1
            def fn(kk=kk, rt=rt, q=q):
                O.lds(f"ds_read_b128 {vr(XR(s, kk, rt),4)}, v{XRD+kk} offset:{XS[s&3]*8192 - XB + rt*2048}", ("x", s, kk, rt))
                return 1
            S.load(("x", s, kk, rt), fn, gate)
        if s < 4: S.load(("pubx", s), lambda: pub(s + 1, G_PX - G_PC), None)
    G1OV = opt.get("g1ov")
    def AC(ACC, c, rt):
        if G1OV and c >= 2 and ACC == ACC1: return ACC0 + (c*2 + rt)*4
        if G1OV and c >= 2 and ACC == ACC0 + 1000: return ACC1 + (c*2 + rt)*4
        return ACC % 1000 + (c*2 + rt)*4
    ACC3 = ACC0 + 1000
    BPOS = opt.get("bpos", 21)
    CHK("K0", G_SEQ, thr[(0, 0)])
    C7 = [0, 2, 3, 1]
    names = {}
    for s in range(8):
        g = f"K{s}"
        flat = []
        def stats(kk):
            L = []
            for rt in range(2):
                xf = XR(s, kk, rt); first = (s == 0 and kk == 0)
                L += [dict(text=M16(SQ+4*rt, xf, xf, first), name=f"S{s}{kk}{rt}a", frags=[("x", s, kk, rt)]),
                      dict(text=M16(SM+4*rt, ONES, xf, first), name=f"S{s}{kk}{rt}b")]
            return L
        ld_x(s, g)
        if s == 7: flat += stats(0) + stats(1)
        order = [(kk, c) for kk in range(2) for c in range(4)]
        if s == 7: order = [(kk, c) for c in C7 for kk in range(2)]
        for i_, (kk, c) in enumerate(order):
            first = (s == 0 and kk == 0)
            if s < 7 and c == 0: flat += stats(kk)
            f, tg = ld_w(0, s, kk, c, g)
            if c == 0: flat.append(dict(text=M16(CS, f, ONES, first), frags=[tg], name=f"C0_{s}_{kk}"))
            for rt in range(2):
                flat.append(dict(text=M16(AC(ACC0, c, rt), f, XR(s, kk, rt), first), frags=[tg], name=f"A0_{s}_{kk}_{c}_{rt}"))
        PUBL(s + 1)
        for k, d in enumerate(flat):
            S.M(**d)
            if s == 7: S.main[-1]["fb"] = opt.get("fb7", 3)
            if k == len(flat) - 1 - (BPOS if s < 7 else opt.get("ka0", 2)):
                if s < 7: CHK(f"K{s+1}", G_SEQ, thr[(0, s+1)])
                else:
                    CHK("KA0", G_SEQ, thr[(1, 1)])
                    if G1OV: S.main[-1]["marks"] = ["G0a"]
            if s == 7 and k == 3: CHK("KD", G_PC, 6)
    S.X("U1E", lambda: O.slabel(".Lc_U1E"))
    if not G1OV: S.X("G1E", lambda: O.slabel(".Lc_G1E"), marks=["G1"])
    gates = {1: ["KA0", "KA0", "KA1", "KA1", "KA1", "KA2", "KA2", "KA2"],
             2: ["KB0", "KB0", "KB0", "KB0", "KB2", "KB2", "KB3", "KB3"]}
    chks = {(1, 1): ("KA1", (1, 4)), (1, 4): ("KA2", (1, 7)), (1, 7): ("KB0", (2, 1)),
            (2, 3): ("KB2", (2, 5)), (2, 5): ("KB3", (2, 7))}
    assert thr[(2, 1)] > thr[(2, 3)]
    for U in (1, 2):
        ACC = ACC1 if U == 1 else ACC3
        for u in range(8):
            order = [(kk, c) for kk in range(2) for c in range(4)]
            if u == 7: order = [(kk, c) for c in range(4) for kk in range(2)]
            if G1OV and (U, u) == (1, 0): order = [(0, 1), (0, 2), (0, 3), (0, 0)] + order[4:]
            for k, (kk, c) in enumerate(order):
                first = (u == 0 and kk == 0)
                f, tg = ld_w(U, u, kk, c, gates[U][u])
                dl = (lambda U=U, u=u: (O("@SPLIT") if UNI[0] and (U, u) == (2, 7) else None, O.slabel(f".Lc_s{U}{u}"))) if (kk, c) == (0, 0) else None
                if c == 0:
                    S.M(M16(CS, ONES, f, first) if U == 1 else M16(CS, f, ONES, first), frags=[tg], name=f"C{U}_{u}_{kk}",
                        marks=(["CSW1"] if first and U == 2 else (["G0b"] if first and G1OV else [])), pre=dl)
                    if U == 1 and G1OV: S.main[-1]["fb"] = opt.get("g1fb", 3)
                for rt in range(2):
                    a = AC(ACC, c, rt); xf = XR(u, kk, rt)
                    S.M(M16(a, xf, f, first) if U == 1 else M16(a, f, xf, first), frags=[tg], name=f"A{U}_{u}_{kk}_{c}_{rt}",
                        marks=(["G0a"] if G1OV and first and (U, c, rt) == (1, 2, 0) else []))
                    if U == 2 and opt.get("fbab") and 1 <= u <= 3: S.main[-1]["fb"] = opt["fbab"]
                    if U == 1 and G1OV: S.main[-1]["fb"] = opt.get("g1fb", 3)
                if k == 3 and (U, u) in chks: CHK(chks[(U, u)][0], G_SEQ, thr[chks[(U, u)][1]])
                if (U, u, k) == (2, 0, 6): CHK("KC1", G_PC, 12)
                if (U, u, k) == (2, 7, opt.get("kc2", 5)):
                    PD = 1.5
                    CHK("KC2", G_PC, 16)
                    S.main[-1]["marks"] = ["CSW2"]
            pv = {(1, 1): 9, (1, 3): 10, (1, 5): 11, (2, 1): 13, (2, 3): 14, (2, 5): 15}.get((U, u))
            if pv: PUBL(pv)
    S.X("END", lambda: O.slabel(".Lc_U3E"))
    LG = lambda c, rt: (f"A2_7_1_{c}_{rt}", min(2, 7 - 2*c - rt))
    MEAN = 14
    PDO = G_PD - G_PC
    S.F(f"""
    v_cndmask_b32_e64 v1, v{SQ}, v{SQ+1}, s[44:45]
    v_cndmask_b32_e64 v2, v{SQ+2}, v{SQ+3}, s[44:45]
    v_cndmask_b32_e64 v3, v{SQ+4}, v{SQ+5}, s[44:45]
    v_cndmask_b32_e64 v1, v1, v2, s[46:47]
    v_cndmask_b32_e64 v2, v{SQ+6}, v{SQ+7}, s[44:45]
    v_cndmask_b32_e64 v{MEAN}, v{SM}, v{SM+4}, s[64:65]
    v_cndmask_b32_e64 v3, v3, v2, s[46:47]
    v_cndmask_b32_e64 v1, 0, v1, s[62:63]
    v_cndmask_b32_e64 v3, 0, v3, s[62:63]
    v_mul_f32 v{MEAN}, {f2u(1.0/512)}, v{MEAN}
    v_permlane32_swap_b32 v1, v3
    v_add_f32 v1, v1, v3
    """, gate=("S711b", 2))
    S.FL(f"ds_write_b128 v{CTW}, {vr(CS,4)}", "ct", gate=("C0_7_1", 2))
    S.FX(lambda: pub(1, PDO), 2)
    GB = ACC1 + 16 if G1OV else ACC1
    CS1, NM, R, SD, K0, K1, TM, SP = GB, GB + 4, GB + 6, GB + 8, GB + 6, GB + 10, ACC1 + 16, GB + 12
    S.F(f"""
    v_mov_b32 v2, v1
    v_cvt_pk_bf16_f32 v3, v{MEAN}, v{MEAN}
    v_permlane16_swap_b32 v1, v2
    v_add_f32 v1, v1, v2
    v_mul_f32 v1, {f2u(1.0/512)}, v1
    v_fma_f32 v1, -v{MEAN}, v{MEAN}, v1
    v_cvt_pk_bf16_f32 v1, v1, v1
    v_lshlrev_b32 v1, 16, v1
    v_add_f32 v1, {EPS}, v1
    v_cvt_pk_bf16_f32 v1, v1, v1
    v_lshlrev_b32 v1, 16, v1
    v_sqrt_f32 v1, v1
    v_lshlrev_b32 v3, 16, v3
    v_cvt_pk_bf16_f32 v1, v1, v1
    v_lshlrev_b32 v{SD}, 16, v1
    v_rcp_f32 v{R}, v{SD}
    v_xor_b32 v{NM}, 0x80000000, v3
    v_add_u32 v{MEAN}, {R_SD & 0xffffffff}, v{RTA}
    """)
    S.FL(f"ds_write_b32 v{MEAN}, v{SD}", "rt")
    S.FL(f"ds_write_b32 v{RTA}, v{NM}", "rt")
    S.FL(f"ds_write_b32 v{RTA}, v{R} offset:{R_R}", "rt")
    for q in range(4, 8):
        S.FL(f"ds_write_b128 v{VD}, {vr(ACC0+4*q,4)} offset:{(q-4)*1024}", "dump", gate=(f"A0_7_1_{q>>1}_{q&1}", 2))
    S.FX(lambda: puball(0, 2, PDO), 2)
    S.MK("G0a")
    S.FL(f"ds_read_b32 v{CS1}, v{CPOLL} offset:{G_PD}", "kc0")
    S.F(f"v_xor_b32 v2, 64, v{CTW}")
    S.F(f"""
    v_mov_b32 v{R+1}, v{R}
    v_mov_b32 v{NM+1}, v{NM}
    v_mov_b32 v{SD+1}, v{SD}
    v_permlane32_swap_b32 v{R}, v{R+1}
    v_permlane32_swap_b32 v{NM}, v{NM+1}
    v_permlane32_swap_b32 v{SD}, v{SD+1}
    """)
    if G1OV:
        for rt in range(2):
            for k in range(4): S.F(f"v_fma_f32 v{ACC0+4*rt+k}, v{NM+rt}, v{CS+k}, v{ACC0+4*rt+k}")
        S.MK("G0b")
    def kk01(R, K0, K1):
        for rt in range(2):
            S.F(f"""
            v_mul_f32 v1, v{R+rt}, v{R+rt}
            v_mul_f32 v1, v1, v{R+rt}
            v_mul_f32 v{K0+rt}, {C0}, v{R+rt}
            v_mul_f32 v{K1+rt}, {C1}, v1
            """)
    def gelu(u, tm, cs, nm, k0, k1, sd_):
        t_ = ""
        if cs is not None:
            for k in range(4): t_ += f"v_fma_f32 v{u[k]}, v{nm}, v{cs+k}, v{u[k]}\n"
        for k in range(4): t_ += f"v_mul_f32 v{tm[k]}, v{u[k]}, v{u[k]}\n"
        for k in range(4): t_ += f"v_fma_f32 v{tm[k]}, v{k1}, v{tm[k]}, v{k0}\n"
        for k in range(4): t_ += f"v_mul_f32 v{tm[k]}, v{u[k]}, v{tm[k]}\n"
        for k in range(4): t_ += f"v_exp_f32 v{tm[k]}, v{tm[k]}\n"
        for k in range(4): t_ += f"v_fma_f32 v{tm[k]}, v{tm[k]}, v{sd_}, v{sd_}\n"
        for k in range(4): t_ += f"v_rcp_f32 v{tm[k]}, v{tm[k]}\n"
        for k in range(4): t_ += f"v_mul_f32 v{u[k]}, v{u[k]}, v{tm[k]}\n"
        return t_
    kk01(R, K0, K1)
    for q in range(4):
        c, rt = q >> 1, q & 1
        u = [ACC0 + 4*q + k for k in range(4)]
        tm = [TM + 4*rt + k for k in range(4)] if not G1OV else [1, 3, 14, 4]
        if q == 2: S.FW("cs1")
        t_ = gelu(u, tm, CS1 if c else (None if G1OV else CS), NM+rt, K0+rt, K1+rt, SD+rt)
        s_, q_ = SP + 2*rt, SP + 2*rt + 1
        for k in range(4):
            if c == 0 and k == 0: continue
            if c == 0 and k == 1:
                t_ += f"v_add_f32 v{s_}, v{u[0]}, v{u[1]}\nv_mul_f32 v{q_}, v{u[0]}, v{u[0]}\n"
            else: t_ += f"v_add_f32 v{s_}, v{s_}, v{u[k]}\n"
            t_ += f"v_fma_f32 v{q_}, v{u[k]}, v{u[k]}, v{q_}\n"
        S.F(t_, gate=(f"A0_7_1_1_{rt}", 1 - rt) if c else None)
        if q == 3: S.FL(f"ds_write_b128 v{VD}, {vr(SP,4)} offset:6144", "sq")
        p = ACC0 + 16 + 2*q if not G1OV else ACC0 + 8*c + 2*rt
        S.F(f"v_cvt_pk_bf16_f32 v{p}, v{u[0]}, v{u[1]}\nv_cvt_pk_bf16_f32 v{p+1}, v{u[2]}, v{u[3]}")
        if rt: S.FL(f"ds_write_b128 v{VD}, {vr(p-2,4)} offset:{4096+c*1024}", "zp")
        if q == 0:
            S.FX(lambda: ctx.check(O, CS1, CPOLL, G_PD, 1, "kc0"), 2)
            S.FL(f"ds_read_b128 {vr(CS1,4)}, v2", "cs1")
    S.FX(lambda: pub(3, PDO), 2)
    S.MK("G1")
    if G1OV: S.FX(lambda: O.slabel(".Lc_G1E"), 0)
    S.FX(lambda: O.vm(f"buffer_load_dword v{CTAG}, off, {SDBG}, 0 sc1", "nonce"), 1)
    hooks.get("c_fills0", lambda S, O: None)(S, O)
    E = XF
    EG = "A2_0_1_3_1"
    NMV, RV = E, E + 8
    CV = [1, AD + 4, AD + 5, AD + 6]
    S.FL(f"ds_write_b32 v{CTR}, v{CS} offset:256", "ct", gate=("C1_7_1", 2))
    S.F(f"v_mov_b32 v1, v{CS}")
    S.FX(lambda: puball(1, 12), 2)
    S.MK("CSW1")
    S.F(f"v_lshrrev_b32 v2, 4, v0\nv_lshl_add_u32 v{RTA}, v2, 5, s52")
    for c in range(1, 4):
        S.F(f"v_xor_b32 v{2+(c&1)}, {c*64}, v{CTR}", gate="KC1")
        S.FL(f"ds_read_b32 v{CV[c]}, v{2+(c&1)} offset:256", ("cv", c))
    for k in range(2):
        S.FL(f"ds_read_b128 {vr(NMV+4*k,4)}, v{RTA} offset:{k*16}", ("rv", k), gate=EG)
        S.FL(f"ds_read_b128 {vr(RV+4*k,4)}, v{RTA} offset:{R_R+k*16}", ("rv", k))
    S.FX(lambda: (O.vwait("nonce"), ctx.nonce(O, CTAG)), 2)
    S.FW(("rv", 1))
    for c in range(4):
        a0 = AC(ACC1, c, 0)
        S.F("\n".join(f"v_fma_f32 v{a0+k}, v{NMV+k}, v{CV[c]}, v{a0+k}" for k in range(8)))
        S.F("\n".join(f"v_mul_f32 v{a0+k}, v{a0+k}, v{RV+k}" for k in range(8)))
        S.F("\n".join(f"v_cvt_pk_bf16_f32 v{a0+k}, v{a0+2*k}, v{a0+2*k+1}" for k in range(4)))
        S.FX(lambda a0=a0, c=c: O.vm(f"buffer_store_dwordx4 {vr(a0,4)}, v{GA}, {SWS}, {SO[c]} offen sc1", "abst"), 2)
    S.FX(lambda: O.slabel(".Lc_abst"), 0)
    CSV, NM, R, SD, K0, K1, TM = E + 16, E + 32, E + 34, E + 36, E + 34, E + 38, E + 40
    ZDEF = opt.get("zdef")
    GZ = AD + 7 if ZDEF else GA
    S.F(f"""
    v_and_b32 v1, 15, v0
    v_and_b32 v2, 12, v0
    v_add_u32 v1, v1, v2
    v_lshl_add_u32 v{RTA}, v1, 2, s52
    v_add_u32 v3, {R_SD & 0xffffffff}, v{RTA}
    v_lshrrev_b32 v2, 5, v0
    v_lshlrev_b32 v{GZ}, 15, v2
    v_lshl_add_u32 v{GZ}, v1, 4, v{GZ}
    v_bfe_u32 v2, v0, 4, 1
    v_lshl_add_u32 v{GZ}, v2, 6, v{GZ}      ; (G>>1)*32768 + (tok+4(G&1))*16
    """)
    S.FL(f"ds_read2_b32 {vr(R,2)}, v{RTA} offset0:{R_R//4} offset1:{R_R//4+4}", "rt2", gate="A2_2_1_3_1")
    S.FL(f"ds_read2_b32 {vr(NM,2)}, v{RTA} offset0:0 offset1:4", "rt2")
    S.FL(f"ds_read2_b32 {vr(SD,2)}, v3 offset0:0 offset1:4", "rt2")
    S.FW("rt2")
    kk01(R, K0, K1)
    def flag(sreg, tag, lbl):
        O.vwait(tag)
        O("s_mov_b64 exec, 1")
        O.vm(f"buffer_store_dword v{CTAG}, off, {SWS}, {sreg} sc1")
        O("s_mov_b64 exec, -1")
        O.slabel(lbl)
    FP = opt.get("flp", 7)
    if FP < 8: S.FX(lambda: flag("s56", "abst", ".Lc_abfl"), 2, gate=f"A2_{FP-1}_1_3_1")
    S.FL(f"ds_write_b128 v{CTW}, {vr(CS,4)} offset:512", "ct", gate=("C2_7_1", 2))
    S.FX(lambda: puball(2, 16), 2)
    S.MK("CSW2")
    hooks.get("c_fills1", lambda S, O: None)(S, O)
    for c in range(1, 4):
        S.F(f"v_xor_b32 v{2+(c&1)}, {c*64}, v{CTW}", gate="KC2")
        S.FL(f"ds_read_b128 {vr(CSV+4*c,4)}, v{2+(c&1)} offset:512", ("cv2", c))
    for c in range(4):
        a0 = AC(ACC3, c, 0)
        hooks.get("c_z1c", lambda S, O, c: None)(S, O, c)
        if c: S.FW(("cv2", c))
        for rt in range(2):
            u = [a0 + 4*rt + k for k in range(4)]
            tm = [TM + 4*rt + k for k in range(4)]
            t_ = gelu(u, tm, CSV + 4*c if c else CS, NM+rt, K0+rt, K1+rt, SD+rt)
            zd = ZD + 4*c if ZDEF else a0
            t_ += f"v_cvt_pk_bf16_f32 v{zd+2*rt}, v{u[0]}, v{u[1]}\nv_cvt_pk_bf16_f32 v{zd+2*rt+1}, v{u[2]}, v{u[3]}\n"
            S.F(t_, gate=LG(c, rt))
        S.F(f"v_permlane16_swap_b32 v{zd}, v{zd+2}\nv_permlane16_swap_b32 v{zd+1}, v{zd+3}")
        if not ZDEF: S.FX(lambda a0=a0, c=c: O.vm(f"buffer_store_dwordx4 {vr(a0,4)}, v{GA}, {SWS}, {SZ[c]} offen sc1", "z1st"), 1)
        if FP == 8 + c: S.FX(lambda: flag("s56", "abst", ".Lc_abfl"), 2)
    FB = opt.get("fb", 2)
    S.emit(lambda i, m: m.get("fb", FB), lambda i, m: (18 if m["name"] == "K0" else opt.get("clm", 2)) if m.get("chk") else opt.get("lm", 2), True)
    O.z1flag = lambda: flag("s57", "z1st", ".Lc_z1fl")
    if ZDEF:
        def z1st():
            for c in range(4): O.vm(f"buffer_store_dwordx4 {vr(ZD+4*c,4)}, v{GZ}, {SWS}, {SZ[c]} offen sc1", "z1st")
        def z1f():
            O("s_mov_b64 exec, 1")
            O.vm(f"buffer_store_dword v{CTAG}, off, {SWS}, s57 sc1")
            O("s_mov_b64 exec, -1")
        O.z1flag = z1st; O.z1f = z1f
    O.slabel(".Lc_p1end")
    return O


def v7_compute(ctx, thr, hooks, SO):
    opt = ctx.opt
    O = Stream(ctx, "c", "y")
    O(".Lc_v7:")
    S = Sched(ctx, O, NF, FIFO)
    SQ, SM = ACC1 + 16, ACC1 + 24
    WA = AD
    ad = [AddrReg(AD + k, 0) for k in range(8)]
    def XR(s, kk, rt): return XF + ((s*2 + kk)*2 + rt)*4
    def AC(ACC, c, rt): return ACC + (c*2 + rt)*4
    def CHK(name, goff, need):
        S.X("P" + name, lambda: O.lds(f"ds_read_b32 v{CC}, v{CPOLL} offset:{goff}", ("pre", name)))
        S.X(name, lambda: ctx.check(O, CC, CPOLL, goff, need, ("pre", name)))
        S.main[-1]["chk"] = True
    def pub(val, off=0):
        O(f"v_mov_b32 v{CT_}, {val}")
        O.lds(f"ds_write_b32 v{CPUB}, v{CT_}" + (f" offset:{off}" if off else ""), "pub")
        return 1
    O.vm(f"buffer_load_dword v{CTAG}, off, {SDBG}, 0 sc1", "nonce")
    for s in range(8):
        CHK(f"K{s}", G_SEQ, thr[("x", s)])
        for q in range(4):
            kk, rt = q >> 1, q & 1
            def fn(kk=kk, rt=rt, s=s):
                O.lds(f"ds_read_b128 {vr(XR(s, kk, rt),4)}, v{XRD+kk} offset:{XS[s&3]*8192 - XB + rt*2048}", ("x", s, kk, rt)); return 1
            S.load(("x", s, kk, rt), fn, f"K{s}")
        S.load(("pubx", s), (lambda s=s: pub(s + 1, G_PX - G_PC)) if s < 4 else (lambda s=s: pub(s + 1)), None)
        for kk in range(2):
            for rt in range(2):
                xf = XR(s, kk, rt); first = (s == 0 and kk == 0)
                S.M(M16(SQ+4*rt, xf, xf, first), frags=[("x", s, kk, rt)], name=f"S{s}{kk}{rt}a")
                S.M(M16(SM+4*rt, ONES, xf, first), name=f"S{s}{kk}{rt}b")
    state = dict(pat=0)
    def ld_w(U, u, kk, c, gate):
        sl = S.newslot(); f = FIFO + 4*sl; tag = (U, u, kk, c)
        def fn():
            if state["pat"] == 0:
                O(f"""
                v_and_b32 v{AD+2}, 15, v0
                v_lshrrev_b32 v{AD}, 1, v{AD+2}
                v_lshrrev_b32 v{AD+1}, 4, v0
                v_xor_b32 v{AD}, v{AD}, v{AD+1}
                v_lshlrev_b32 v{AD}, 4, v{AD}
                v_lshl_add_u32 v{AD}, v{AD+2}, 7, v{AD}
                s_lshl_b32 s3, {sW}, 11
                v_add_u32 v{AD}, s3, v{AD}
                """)
                for k in range(1, 8): O(f"v_xor_b32 v{AD+k}, {(k&3)*2048 + (k>>2)*64}, v{AD}")
                state["pat"] = 1
            k = c + 4*kk
            o = ad[k].off(O, TP7[U][u]*8192)
            O.lds(f"ds_read_b128 {vr(f,4)}, v{AD+k} offset:{o}", tag); return 1
        S.load(tag, fn, gate, sl)
        return f, tag
    for U in (1, 2):
        ACC = ACC0 if U == 1 else ACC1
        CHK(f"KW{U}", G_SEQ, thr[(U, 7)])
        for u in range(8):
            for kk in range(2):
                for c in range(4):
                    first = (u == 0 and kk == 0)
                    f, tg = ld_w(U, u, kk, c, f"KW{U}")
                    if c == 0: S.M(M16(CS, ONES, f, first), frags=[tg], name=f"C{U}_{u}_{kk}", marks=(["CSW1"] if first and U == 2 else []))
                    for rt in range(2):
                        S.M(M16(AC(ACC, c, rt), XR(u, kk, rt), f, first), frags=[tg], name=f"A{U}_{u}_{kk}_{c}_{rt}")
            if (U, u) == (2, 0): CHK("KC1", G_PC, 9)
    CHK("KC2", G_PC, 16)
    S.main[-2]["marks"] = ["CSW2"]
    MEAN = 14
    NM, R, SD = ACC1 + 4, ACC1 + 6, ACC1 + 8
    S.F(f"""
    v_cndmask_b32_e64 v1, v{SQ}, v{SQ+1}, s[44:45]
    v_cndmask_b32_e64 v2, v{SQ+2}, v{SQ+3}, s[44:45]
    v_cndmask_b32_e64 v3, v{SQ+4}, v{SQ+5}, s[44:45]
    v_cndmask_b32_e64 v1, v1, v2, s[46:47]
    v_cndmask_b32_e64 v2, v{SQ+6}, v{SQ+7}, s[44:45]
    v_cndmask_b32_e64 v{MEAN}, v{SM}, v{SM+4}, s[64:65]
    v_cndmask_b32_e64 v3, v3, v2, s[46:47]
    v_cndmask_b32_e64 v1, 0, v1, s[62:63]
    v_cndmask_b32_e64 v3, 0, v3, s[62:63]
    v_mul_f32 v{MEAN}, {f2u(1.0/512)}, v{MEAN}
    v_permlane32_swap_b32 v1, v3
    v_add_f32 v1, v1, v3
    v_mov_b32 v2, v1
    v_cvt_pk_bf16_f32 v3, v{MEAN}, v{MEAN}
    v_permlane16_swap_b32 v1, v2
    v_add_f32 v1, v1, v2
    v_mul_f32 v1, {f2u(1.0/512)}, v1
    v_fma_f32 v1, -v{MEAN}, v{MEAN}, v1
    v_cvt_pk_bf16_f32 v1, v1, v1
    v_lshlrev_b32 v1, 16, v1
    v_add_f32 v1, {EPS}, v1
    v_cvt_pk_bf16_f32 v1, v1, v1
    v_lshlrev_b32 v1, 16, v1
    v_sqrt_f32 v1, v1
    v_lshlrev_b32 v3, 16, v3
    v_cvt_pk_bf16_f32 v1, v1, v1
    v_lshlrev_b32 v{SD}, 16, v1
    v_rcp_f32 v{R}, v{SD}
    v_xor_b32 v{NM}, 0x80000000, v3
    """, gate=("S711b", 2))
    S.FL(f"ds_write_b32 v{RTA}, v{NM}", "rt")
    S.FL(f"ds_write_b32 v{RTA}, v{R} offset:{R_R}", "rt")
    S.FX(lambda: (O.vwait("nonce"), ctx.nonce(O, CTAG)), 2)
    S.F(f"v_lshrrev_b32 v2, 4, v0\nv_lshl_add_u32 v{RTA}, v2, 5, s52")
    E = XF
    NMV, RV = E, E + 8
    CV = [1, E + 16, E + 17, E + 18]
    for U in (1, 2):
        ACC = ACC0 if U == 1 else ACC1
        S.FL(f"ds_write_b32 v{CTR}, v{CS} offset:{256*U}", "ct", gate=(f"C{U}_7_1", 2))
        S.F(f"v_mov_b32 v1, v{CS}")
        S.FX(lambda U=U: pub(9 if U == 1 else 16), 2, gate=(f"A{U}_7_1_3_0"))
        S.MK(f"CSW{U}")
        if U == 1:
            for k in range(2):
                S.FL(f"ds_read_b128 {vr(NMV+4*k,4)}, v{RTA} offset:{k*16}", ("rv", k), gate="A2_1_1_3_1")
                S.FL(f"ds_read_b128 {vr(RV+4*k,4)}, v{RTA} offset:{R_R+k*16}", ("rv", k))
        for c in range(1, 4):
            S.F(f"v_xor_b32 v{2+(c&1)}, {c*64}, v{CTR}", gate=f"KC{U}")
            S.FL(f"ds_read_b32 v{CV[c]}, v{2+(c&1)} offset:{256*U}", ("cv", c))
        S.FW(("cv", 3))
        for c in range(4):
            a0 = AC(ACC, c, 0)
            S.F("\n".join(f"v_fma_f32 v{a0+k}, v{NMV+k}, v{CV[c]}, v{a0+k}" for k in range(8)))
            S.F("\n".join(f"v_mul_f32 v{a0+k}, v{a0+k}, v{RV+k}" for k in range(8)))
            S.F("\n".join(f"v_cvt_pk_bf16_f32 v{a0+k}, v{a0+2*k}, v{a0+2*k+1}" for k in range(4)))
            if U == 2: S.F(f"s_add_u32 {SO[c]}, {SO[c]}, {512*16}")
            S.FX(lambda a0=a0, c=c: O.vm(f"buffer_store_dwordx4 {vr(a0,4)}, v{GA}, {SWS}, {SO[c]} offen sc1", "abst"), 2)
    def flag():
        O.vwait("abst")
        O("s_mov_b64 exec, 1")
        O.vm(f"buffer_store_dword v{CTAG}, off, {SWS}, s56 sc1")
        O.vm(f"buffer_store_dword v{CTAG}, off, {SWS}, s56 offset:{8*256} sc1")
        O("s_mov_b64 exec, -1")
        O(".Lc_abfl7_y:")
        pub(1, G_PD - G_PC)
    S.FX(flag, 2)
    hooks.get("c_fills1", lambda S, O: None)(S, O)
    S.FL(f"ds_read_b32 v{CC}, v{CPOLL} offset:{G_SEQ}", "kj")
    S.FX(lambda: ctx.check(O, CC, CPOLL, G_SEQ, thr["join"] + 4*opt.get("v7w", 4), "kj", ["s_sleep 2"]))
    for c in range(4): hooks.get("c_z1c", lambda S, O, c: None)(S, O, c)
    S.emit(lambda i, m: 3, lambda i, m: 5 if m.get("chk") else 2, True)
    O("s_waitcnt vmcnt(0) lgkmcnt(0)")
    if opt.get("zdef"): O(f"v_lshlrev_b32 v{AD+7}, 4, v0")
    O("s_branch .Lc_p1end_y")
    ctx.ool += O.fixed()
```

```python
from gzlib import *
import gz1
from gz1 import HPOLL, HPUB, HC, HT, CPOLL, CPUB, CC, CT_, AX, CTAG
import re

VP, VO, VT = 200, 204, 206
sWB, sK, sSL, sN, sNEED, sLAST, sOB = "s50", "s51", "s63", "s66", "s67", "s68", "s69"
PRE_PC = [10, 11, 12, 13, 14, 15, 15, 15]
PRE_PW = [0, 0, 0, 0, 0, 0, 4, 4]
WO_UNIT = [16, 0, 2, 4, 6, 8, 10]

def ids(sd, tb, fb, sg, opt={}):
    t = ids0(sd, tb, fb, sg)
    if opt.get("brot"):
        BL = opt["brot"]
        t += f"""
        s_lshl1_add_u32 {sg}, {fb if sd == "y" else tb}, {tb if sd == "y" else fb}
        s_and_b32 {sg}, {sg}, 7
        """
        if BL == 16: t += f"s_lshl_b32 {sg}, {sg}, 1\n"
    if opt.get("sprd"):
        t += f"""
        s_mul_i32 s3, {tb}, {opt['sprd']}
        s_add_u32 {sg}, {sg}, s3
        s_and_b32 {sg}, {sg}, 31
        """
    return t

def ids0(sd, tb, fb, sg):
    if sd == "y":
        return f"""
        s_and_b32 {tb}, s2, 1
        s_lshl_b32 {tb}, {tb}, 3
        s_lshr_b32 s3, s2, 5
        s_add_u32 {tb}, {tb}, s3
        s_bfe_u32 {sg}, s2, {3 | (2 << 16)}
        s_bfe_u32 {fb}, s2, {1 | (1 << 16)}
        s_lshl2_add_u32 {fb}, {fb}, {sg}
        s_lshl_b32 {sg}, {sg}, 3
        """
    return f"""
        s_mov_b32 {tb}, {sRB}
        s_add_u32 {fb}, {sJ}, 8
        s_lshl_b32 {sg}, {sJ}, 2
        """

def install_hooks(ctx, sd, hooks):
    opt = ctx.opt
    def setup(h):
        e = h.e
        if gz1.UNI[0]:
            assert opt.get("norot") and not opt.get("brot")
            e(f"""
            s_and_b32 {sWB}, s2, 1
            s_lshl_b32 {sWB}, {sWB}, 3
            s_lshr_b32 s3, s2, 5
            s_add_u32 {sWB}, {sWB}, s3
            s_bitcmp1_b32 s2, 2
            s_cselect_b32 {sWB}, {sRB}, {sWB}
            """)
        else: e(ids(sd, sWB, sSL, sK, opt))
        if opt.get("norot") and not opt.get("brot"): e(f"s_mov_b32 {sK}, 0")
        e(f"""
        s_lshl2_add_u32 {sWB}, {sWB}, {sW}
        s_lshl_b32 {sWB}, {sWB}, 17             ; (tblk*128+32e)*4096
        s_lshl_b32 {sK}, {sK}, 7
        v_lshrrev_b32 v1, 3, v0
        v_and_b32 v2, 7, v0
        v_lshrrev_b32 v3, 4, v0
        v_xor_b32 v3, v2, v3
        v_lshlrev_b32 v3, 4, v3
        v_lshl_add_u32 v{VP}, v1, 12, v3
        v_xor_b32 v{VP+1}, 64, v{VP}
        v_add_u32 v{VP+2}, {16*4096-2048}, v{VP}
        v_add_u32 v{VP+3}, {24*4096-3072}, v{VP+1}
        v_add_u32 v{VP+1}, {8*4096-1024}, v{VP+1}
        v_bfe_u32 v3, v0, 4, 1
        v_lshlrev_b32 v3, 2, v3
        v_xor_b32 v2, v2, v3
        v_lshlrev_b32 v2, 4, v2
        v_lshl_add_u32 v{VO}, v1, 10, v2
        v_add_u32 v{VO+1}, {8*1024-1024}, v{VO}
        s_lshl_b32 {sOB}, {sW}, 14
        s_xor_b32 s3, {sJ}, {opt.get("dx", 0)}
        s_lshl_b32 s3, s3, 7
        s_add_u32 {sOB}, {sOB}, s3              ; 16e*1024 + d64*128
        v_lshlrev_b32 v{VT}, 7, v0
        """)
        h.npre = 0
    def pre(h, upto):
        e = h.e
        while h.npre < upto:
            n = h.npre; h.npre += 1
            if n == 0 or PRE_PC[n] != PRE_PC[n-1]: h.wait(G_PC, PRE_PC[n])
            if n and PRE_PW[n] != PRE_PW[n-1]: h.wait(G_PW, PRE_PW[n])
            dma_p(h, slot_of(n)*16384, ("p", n))
    pl = opt.get("pl", 30)
    a, b, c_ = pl // 1000, pl // 100 % 10, pl // 10 % 10
    old = hooks.get("h_setup", lambda h: None)
    hooks["h_setup"] = lambda h: (old(h), setup(h))
    hooks["h_prepoll"] = lambda h: pre(h, a)
    hooks["h_postpoll"] = lambda h: pre(h, b)
    hooks["h_preflag"] = lambda h: pre(h, c_)
    ctx.pre = pre
    if opt.get("dtc"):
        def dtouch(h):
            e = h.e; D = opt["dtc"]
            e(f"""
            v_lshrrev_b32 v126, 3, v0
            v_and_b32 v127, 7, v0
            v_lshlrev_b32 v127, 7, v127
            v_lshl_add_u32 v126, v126, 12, v127
            s_lshr_b32 s3, s2, 6
            s_mul_i32 s3, s3, 7
            s_add_u32 s3, s3, {sJ}
            s_lshl2_add_u32 s3, s3, {sW}            ; wi 0..111
            """)
            offs = [4096 - 1024*(k + 1) for k in range(D)][::-1]
            if sd == "y":
                e(f"""
                s_and_b32 s64, s2, 1
                s_lshl_b32 s64, s64, 7
                s_add_u32 s3, s3, s64
                s_lshl_b32 s3, s3, 15
                """)
                for o in offs: e.vm(f"buffer_load_dword v127, v126, {SWP}, s3 offen offset:{o}")
            else:
                e(f"""
                s_cmp_lt_u32 s3, 64
                s_cbranch_scc0 .Lh_dt2
                s_and_b32 s64, s2, 3
                s_lshl_b32 s64, s64, 6
                s_add_u32 s3, s3, s64
                s_lshl_b32 s3, s3, 15
                """)
                for o in offs: e.vm(f"buffer_load_dword v127, v126, {SWP}, s3 offen offset:{o}")
                e(".Lh_dt3:")
                if opt.get("dwo"):
                    ctx.ool += [x.strip() for x in f""".Lh_dt4:
                    s_and_b32 s64, s2, 3
                    s_lshl_b32 s64, s64, 5
                    s_add_u32 s3, s3, s64
                    s_sub_u32 s3, s3, 80
                    s_min_u32 s3, s3, 111
                    s_and_b32 s64, s3, 3
                    s_lshr_b32 s3, s3, 2
                    s_lshl_b32 s3, s3, 5
                    s_add_u32 s3, s3, s64
                    s_lshl_b32 s3, s3, 10""".split("\n")] + [f"buffer_load_dword v127, v126, {SWO}, s3 offen" for o in offs] + ["s_branch .Lh_dt3"]
                ctx.ool += [x.strip() for x in f""".Lh_dt2:
                {"s_cmp_ge_u32 s3, 80" if opt.get("dwo") else "s_min_u32 s3, s3, 79"}
                {"s_cbranch_scc1 .Lh_dt4" if opt.get("dwo") else "s_nop 0"}
                s_and_b32 s64, s2, 1
                s_lshl_b32 s64, s64, 7
                s_add_u32 s3, s3, s64
                s_add_u32 s3, s3, 48
                s_lshl_b32 s3, s3, 15""".split("\n")] + [f"buffer_load_dword v127, v126, {STCH}, s3 offen offset:{o}" for o in offs] + ["s_branch .Lh_dt3"]
        hooks[["h_t3", "h_gran", "h_postpoll", "h_preflag"][opt.get("dtp", 0)]] = dtouch
    if opt.get("ctc"):
        def ctc(S, O):
            assert gz1.UNI[0]
            S.F(f"""
            v_lshrrev_b32 v1, 3, v0
            v_and_b32 v2, 7, v0
            v_lshlrev_b32 v2, 7, v2
            v_lshl_add_u32 v1, v1, 12, v2
            s_lshr_b32 s44, s2, 6
            s_mul_i32 s44, s44, 7
            s_add_u32 s44, s44, {sJ}
            s_lshl2_add_u32 s44, s44, {sW}
            s_and_b32 s45, s2, 1
            s_lshl_b32 s45, s45, 7
            s_and_b32 s46, s2, 3
            s_lshl_b32 s46, s46, 6
            """, gate=(None if opt["ctc"] == 1 else f"A1_{opt['ctc']}_0_0_0"))
            def f():
                O(f"""
                s_bitcmp1_b32 s2, 2
                s_cselect_b32 s46, s46, s45
                s_cselect_b32 s47, 64, 112
                s_cmp_lt_u32 s44, s47
                s_cbranch_scc0 .Lc_ct2
                s_add_u32 s44, s44, s46
                s_lshl_b32 s44, s44, 15
                """)
                O.vm(f"buffer_load_dword v5, v1, {SWP}, s44 offen offset:{opt.get('cto', 0)}")
                O(".Lc_ct3:")
                if sd == "y": ctx.ool += [x.strip() for x in f""".Lc_ct2:
                    s_min_u32 s44, s44, 79
                    s_add_u32 s44, s44, s45
                    s_add_u32 s44, s44, 48
                    s_lshl_b32 s44, s44, 15
                    buffer_load_dword v5, v1, {STCH}, s44 offen offset:{opt.get('cto', 0)}
                    s_branch .Lc_ct3""".split("\n")]
            S.FX(f, 2)
        hooks["c_fills0"] = ctc
    if opt.get("zfl"):
        def early(S, O):
            S.F(ids(sd, "s76", "s77", sFL, opt))
            S.F(f"""
            s_lshl_b32 {sFL}, s77, 1
            s_lshr_b32 s3, {sW}, 1
            s_add_u32 {sFL}, {sFL}, s3
            s_lshl_b32 {sFL}, {sFL}, 8
            s_add_u32 {sFL}, {sFL}, {WS_F}
            v_lshlrev_b32 v{VBE+8}, 2, v0
            """)
            if sd == "g":
                S.F(f"""
                v_and_b32 v1, 15, v0
                v_lshlrev_b32 v1, 1, v1
                s_lshl_b32 s3, s76, 8
                """)
                for nt in range(8): S.FX(lambda nt=nt: O.vm(f"buffer_load_ushort v{VBE+nt}, v1, {SBSP}, s3 offen offset:{nt*32}", "bias"), 1)
        hooks["c_fills1"] = early
        hooks["c_z1c"] = lambda S, O, c: S.FX(lambda: O.vm(f"buffer_load_dword v{VBE+8}, v{VBE+8}, {SWS}, {sFL} offen sc1", "fl"), 1) if c == opt["zfl"] - 1 else None

def dma_p(h, slot, tag=None):
    e = h.e
    e(f"s_add_u32 m0, s49, {slot}")
    e(f"s_add_u32 s3, {sWB}, {sK}")
    for q in range(4):
        e.vm(f"buffer_load_dwordx4 v{VP+q}, {SWP}, s3 offen{' offset:%d' % (q*1024) if q else ''} lds" if not (h.ctx.opt.get("p2nw") and tag is None) else "s_nop 0", tag)
    e(f"s_add_u32 {sK}, {sK}, {0 if h.ctx.opt.get('p2wk') and tag is None else 128}")
    e(f"s_and_b32 {sK}, {sK}, {h.ctx.opt.get('brot', 32)*128 - 1}")
    if tag: h.thr[tag] = e.nvm

def p2_helper(ctx, sd, h):
    e = h.e; opt = ctx.opt
    ctx.pre(h, 8)
    N0 = e.nvm; h.thr["N0"] = N0
    e.lwaitall()
    e(f"""
    s_mov_b32 {sN}, {N0}
    s_mov_b32 {sNEED}, 17
    s_mov_b32 {sSL}, {slot_of(8)*16384}
    s_mov_b32 {sLAST}, -1
    """)
    if opt.get("brot") == 8: e(f"s_add_u32 {sWB}, {sWB}, 1024")
    if sd == "g":
        e(f"""
        s_cmp_lt_u32 {sJ}, 7
        s_cbranch_scc1 .Lh2_loop_@S
        s_waitcnt vmcnt(0)
        s_branch .Lh2_done_@S
        """)
    tp = ctx.trypub(sN, HPUB, HT)
    e(f"""
    .Lh2_loop_@S:
    ds_read_b32 v{HC}, v{HPOLL} offset:{G_PC}
    """)
    e("\n".join(tp[:5]))
    e(f"""
    s_cmp_eq_u32 s3, {sLAST}
    s_cbranch_scc1 .Lh2_np_@S
    s_mov_b32 {sLAST}, s3
    {tp[5]}
    {tp[6]}
    .Lh2_np_@S:
    s_waitcnt lgkmcnt(0)
    v_cmp_gt_u32 vcc, {sNEED}, v{HC}
    {"s_sub_u32 s3, %s, s3" % sN if "wcap" in opt else ""}
    {"s_cmp_gt_u32 s3, %d" % opt["wcap"] if "wcap" in opt else ""}
    {"s_cbranch_scc1 .Lh2_loop_@S" if "wcap" in opt else ""}
    s_cbranch_vccz .Lh2_go_@S
    s_cmp_eq_u32 {sBUD}, 0
    s_cbranch_scc1 .Lh2_go_@S
    s_sub_u32 {sBUD}, {sBUD}, 1
    s_sleep {opt.get('hs2', 1)}
    s_branch .Lh2_loop_@S
    .Lh2_go_@S:
    """)
    dma_p(h, sSL)
    e(f"""
    s_add_u32 {sSL}, {sSL}, 16384
    s_and_b32 {sSL}, {sSL}, {8*16384-1}
    {"s_cmp_lg_u32 %s, 24" % sNEED if opt.get("brot") == 16 else ""}
    {"s_cselect_b32 s3, 0, %d" % (opt["brot"]*128) if opt.get("brot") else ""}
    {"s_add_u32 %s, %s, s3" % (sWB, sWB) if opt.get("brot") else ""}
    s_add_u32 {sN}, {sN}, 4
    s_add_u32 {sNEED}, {sNEED}, 1
    s_cmp_lt_u32 {sNEED}, {17+24}
    s_cbranch_scc1 .Lh2_loop_@S
    .Lh2_done_@S:
    """)
    e.nvm = N0 + 96
    if opt.get("tch"):
        Y = sd == "y"; n = h.tch_n; TY = opt.get("tyg", 2)
        t = [f".Lh_tch_{sd}:"] + ctx.trypub(n, HPUB, HT) + f"""
        s_cmp_eq_u32 s3, {n}
        s_cbranch_scc0 .Lh_tch_{sd}
        v_mov_b32 v{HT}, {h.tch_join if Y else (N0 if opt["tch"] == 1 else 0)}
        ds_write_b32 v{HPUB}, v{HT}
        v_mov_b32 v{HT}, 4
        ds_write_b32 v{HPUB}, v{HT} offset:{G_PW}
        v_lshrrev_b32 v1, 2, v0
        v_and_b32 v2, 3, v0
        v_lshlrev_b32 v2, 7, v2
        v_lshl_add_u32 v1, v1, 12, v2
        s_lshr_b32 s3, s2, 6
        s_lshl2_add_u32 s3, s3, {sW}            ; tw
        s_and_b32 s64, s2, 1
        s_lshl_b32 s64, s64, 4
        s_add_u32 s64, s64, s3
        s_lshl_b32 s64, s64, 18                 ; (1024(q&1) + 64tw)*4096
        s_and_b32 s65, s2, 3
        s_lshl_b32 s65, s65, 4
        s_add_u32 s65, s65, s3
        s_lshl_b32 s65, s65, 17                 ; (512q + 32tw)*4096
        """.split("\n")
        if not Y: t += ["s_sleep 16"] * opt.get("tdel", 0)
        def tl(S_, sb, m, g): return [f"s_add_u32 s3, {sb}, {m*65536}", f"buffer_load_dword v127, v1, {S_}, s3 offen offset:{1024 + g*512}"]
        TO = {0: "y0 g0 y1 g1 y2 g2 y3 g3 y4 g4 y5 g5", 1: "g0 y0 g1 y1 g2 y2 g3 y3 g4 y4 g5 y5",
              2: "g0 y0 g1 g2 y1 g3 y2 g4 y3 g5 y4 y5", 3: "g0 g1 y0 g2 g3 y1 g4 g5 y2 y3 y4 y5",
              4: "y1 g1 y2 g2 y3 g3 y4 g4 y5 g5", 5: "g1 y1 g2 y2 g3 g4 y3 g5 y4 y5",
              6: "y0 g0 y1 g1 y2 g2 y3 g3", 7: "y0 g0 y1 g1", 8: "g0 y0 g1 y1 g2 y2 g3 y3"}[opt.get("tord", 0)].split()
        for it in TO:
            g = int(it[1])
            if it[0] == "y" and (Y and g < TY or not Y and g >= TY):
                for m in range(4): t += tl(SWP if Y else STCH, "s64", m, g)
            if it[0] == "g" and not Y:
                for m in range(2): t += tl(SWP, "s65", m, g)
        t += [f".Lh_tchi_{sd}:", "s_waitcnt vmcnt(0) lgkmcnt(0)", f".Lh_tche_{sd}:", f"s_branch .Lh_tjoin_{sd}" if Y else f"s_branch .Lh2_done_{sd}"]
        ctx.ool += hazfix.fix([x.strip() for x in t if x.strip()])[0]
    if opt.get("stop", 3) >= 3:
        e(f"""
        s_lshr_b32 s3, s2, 3
        s_lshl2_add_u32 s3, s3, {sW}
        s_min_u32 s3, s3, 111
        s_lshl_b32 s3, s3, 13
        """)
        if opt.get("wot", 1): e.vm(f"buffer_load_dword v{VT+1}, v{VT}, {SWO}, s3 offen")
        for j in range(7):
            h.wait(G_PC, 16 + 24 + j if j else 16)
            for kh in range(2):
                e(f"s_add_u32 m0, s48, {(WO_UNIT[j]+kh)*8192}")
                e(f"s_add_u32 s3, {sOB}, {(7*kh+j)*65536}")
                e.vm(f"buffer_load_dwordx4 v{VO}, {SWO}, s3 offen lds")
                e.vm(f"buffer_load_dwordx4 v{VO+1}, {SWO}, s3 offen offset:1024 lds")
            h.trypub()
        h.thr["wo"] = e.nvm
    tp = ctx.trypub(e.nvm, HPUB, HT)
    e(".Lh2_dr_@S:")
    e("\n".join(tp))
    e(f"""
    s_cmp_eq_u32 s3, {e.nvm}
    s_cbranch_scc1 .Lh2_end_@S
    s_sleep 1
    s_branch .Lh2_dr_@S
    .Lh2_end_@S:
    s_waitcnt vmcnt(0) lgkmcnt(0)
    """)
    e.slabel(".Lh_p2end")

AX2, VA, VS, VF, VB, VFR = 16, 20, 24, 25, 26, 30
BF, ACC, AF = 32, 64, 128
sTB, sFB, sKA, sAB, sT, sIT, sO0, sO1, sFL, sGF = "s48", "s49", "s50", "s51", "s52", "s53", "s58", "s59", "s60", "s61"
sA = "s56"
LA = 8
VBE = 176

def p2_compute(ctx, sd, O, h):
    opt = ctx.opt
    Y = sd == "y"
    N0 = h.thr["N0"]
    O(ids(sd, sTB, sFB, sKA, opt))
    if opt.get("norot") and not opt.get("brot"): O(f"s_mov_b32 {sKA}, 0")
    O(f"""
    s_lshl_b32 {sFL}, {sFB}, 1
    s_lshr_b32 s3, {sW}, 1
    s_add_u32 {sFL}, {sFL}, s3
    s_lshl_b32 {sFL}, {sFL}, 8
    s_add_u32 {sFL}, {sFL}, {WS_F}
    v_lshlrev_b32 v{VF}, 2, v0
    """)
    if not Y:
        O(f"""
        s_cmp_eq_u32 {sJ}, 7
        s_cbranch_scc1 .Lc2_skip
        """)
    O.vm(f"buffer_load_dword v31, v{VF}, {SWS}, {sFL} offen sc1", "fl")
    O(PERM.format(d=1, t=2))
    if not Y:
        O(f"""
        v_lshlrev_b32 v3, 1, v1
        s_lshl_b32 s3, {sTB}, 8
        """)
        for T in range(4): O.vm(f"buffer_load_ushort v{VB+T}, v3, {SBSP}, s3 offen offset:{T*64}", "bias")
    O(f"""
    v_lshrrev_b32 v2, 5, v0
    v_lshlrev_b32 v{VS}, 15, v2
    v_lshl_add_u32 v{VS}, v1, 4, v{VS}
    v_mul_u32_u24 v{VA}, {XP}, v2
    v_lshl_add_u32 v{VA}, v1, 4, v{VA}
    v_add_u32 v{VA+1}, {2*XP}, v{VA}
    v_add_u32 v{VA+2}, {4*XP}, v{VA}
    v_add_u32 v{VA+3}, {6*XP}, v{VA}
    s_lshl2_add_u32 s3, {sFB}, {sW}             ; 4fb+w
    s_lshl_b32 {sAB}, s3, 9                     ; f0*16
    s_mul_i32 {sKA}, {sKA}, {8*XP}
    s_lshl_b32 {sO0}, s3, 17
    s_lshl_b32 {sGF}, s3, 2
    s_lshl_b32 s3, {sTB}, 11
    s_add_u32 {sO0}, {sO0}, s3
    s_add_u32 {sO0}, {sO0}, {WS_Y1}
    s_add_u32 {sO1}, {sO0}, 65536
    s_lshl_b32 s3, {sTB}, 8
    s_add_u32 {sGF}, {sGF}, s3
    s_add_u32 {sGF}, {sGF}, {WS_G + (128 if Y else -128)}
    s_mov_b32 {sT}, {N0 - 28}
    s_mov_b32 {sIT}, 3
    v_mov_b32 v{VFR}, 16
    """)
    for k in range(4):
        b = O.ax[k].base
        if b: O(f"v_subrev_u32 v{AX+k}, {b}, v{AX+k}")
        O(f"v_add_u32 v{AX2+k}, 65536, v{AX+k}")
    if Y:
        for r in range(64): O(f"v_mov_b32 v{ACC+r}, 0")
    else:
        O.vwait("bias")
        for T in range(4): O(f"v_lshlrev_b32 v{VB+T}, 16, v{VB+T}")
        for r in range(64): O(f"v_mov_b32 v{ACC+r}, v{VB+r//16}")
    O(f"""
    s_waitcnt vmcnt(0)
    v_cmp_ne_u32 vcc, {sNONCE}, v31
    s_cbranch_vccnz .Lc2_fl_@S
    .Lc2_go_@S:
    """)
    ctx.ool += f""".Lc2_fl_{sd}:
        buffer_load_dword v31, v{VF}, {SWS}, {sFL} offen sc1
        s_cmp_eq_u32 {sBUD}, 0
        s_waitcnt vmcnt(0)
        s_cbranch_scc1 .Lc2_go_{sd}
        s_sub_u32 {sBUD}, {sBUD}, 16
        s_max_i32 {sBUD}, {sBUD}, 0
        v_cmp_ne_u32 vcc, {sNONCE}, v31
        s_cbranch_vccnz .Lc2_fl_{sd}
        s_branch .Lc2_go_{sd}""".split("\n")
    O.slabel(".Lc_p2go")
    def nextk():
        O(f"""
        s_add_u32 {sA}, {sAB}, {sKA}
        s_add_u32 {sKA}, {sKA}, {8*XP}
        s_cmp_eq_u32 {sKA}, {256*XP}
        s_cselect_b32 {sKA}, 0, {sKA}
        """)
    def lda(n, ks):
        if ks == 0: nextk()
        r = AF + ((n & 7)*4 + ks)*4
        O.vm(f"buffer_load_dwordx4 {vr(r,4)}, v{VA+ks}, {SWS}, {sA} offen sc1" if not (opt.get("p2na") and n >= 8) else "s_nop 0", ("a", n, ks))
    items = []
    for n in range(30):
        for ks in range(4):
            for T in range(4): items.append((n, ks, T))
    for T in range(4):
        for n in (30, 31):
            for ks in range(4): items.append((n, ks, T))
    NI = len(items)
    first = {}; last = {}; lastA = {}; firstA = {}; lastT = {}
    for j, (n, ks, T) in enumerate(items):
        first.setdefault(n, j); last[n] = j; lastA[(n, ks)] = j; firstA.setdefault((n, ks), j); lastT[T] = j
    def rdb(j):
        n, ks, T = items[j]
        s = slot_of(n)
        reg = (AX if s < 4 else AX2) + ks
        O.lds(f"ds_read_b128 {vr(BF+(j&7)*4,4)}, v{reg} offset:{(s&3)*16384 + T*4096}", ("b", j))
        if j == last[n] and not (n == 30):
            O(f"v_add_u32 v{VFR}, {2 if n == 31 else 1}, v{VFR}")
            O.lds(f"ds_write_b32 v{CPUB}, v{VFR}", "pub")
    def prerd(n): O.lds(f"ds_read_b32 v{CC}, v{CPOLL} offset:{G_SEQ}", ("pc", n))
    def chk(n):
        ctx.check(O, CC, CPOLL, G_SEQ, sT, ("pc", n))
        O(f"s_add_u32 {sT}, {sT}, 4")
    PDIST = opt.get("p2pd", 3)
    chkpos = {first[n] - LA: n for n in range(32)}
    prepos = {first[n] - LA - PDIST: n for n in range(32)}
    fills = []
    def ZR(T, b): return AF + (T*2 + b)*4
    for T in range(4):
        g = lastT[T] + 2
        for b in range(2):
            a0 = ACC + 16*T + 8*b
            if Y:
                for k in range(4): fills.append((g, 1, f"v_cvt_pk_bf16_f32 v{a0+k}, v{a0+2*k}, v{a0+2*k+1}"))
            else:
                fills.append((g, 0, lambda T=T, b=b: O.vwait(("z", T, b))))
                for k in range(4):
                    t = 2 if k & 1 else 8
                    z = ZR(T, b) + k
                    fills.append((g, 1, f"v_lshlrev_b32 v{t}, 16, v{z}"))
                    fills.append((g, 1, f"v_and_b32 v{t+1}, 0xffff0000, v{z}"))
                    fills.append((g, 2, f"v_pk_mul_f32 {vr(a0+2*k,2)}, {vr(a0+2*k,2)}, {vr(t,2)}"))
                    fills.append((g, 1, f"v_cvt_pk_bf16_f32 v{a0+k}, v{a0+2*k}, v{a0+2*k+1}"))
            fills.append((g, 2, lambda a0=a0, T=T, b=b: O.vm(f"buffer_store_dwordx4 {vr(a0,4)}, v{VS}, {SWS}, {sO1 if b else sO0} offen offset:{T*512} sc1")))
    prerd(0)
    for n in range(2):
        for ks in range(4): lda(n, ks)
    chk(0)
    O.slabel(".Lc_p2full0")
    for j in range(LA):
        rdb(j)
    for n in range(2, 8):
        for ks in range(4): lda(n, ks)
    marks = []
    fi = 0
    for j, (n, ks, T) in enumerate(items):
        if j % 128 == 0: marks.append(len(O.o))
        if firstA[(n, ks)] == j: O.vwait(("a", n, ks))
        O.lwait(("b", j))
        O(MF(ACC + 16*T, AF + ((n & 7)*4 + ks)*4, BF + (j & 7)*4, False))
        if j in prepos: prerd(prepos[j])
        if j in chkpos: chk(chkpos[j])
        if j + LA < NI: rdb(j + LA)
        if lastA[(n, ks)] == j:
            if n + 8 < 32: lda(n + 8, ks)
            elif not Y and n in (24, 25):
                T_, b_ = ((n - 24)*4 + ks) >> 1, ks & 1
                if n == 24 and ks == 0:
                    O(f"s_add_u32 {sA}, {sO0}, {WS_Z1 - WS_U}")
                    O(f"s_add_u32 {sAB}, {sO1}, {WS_Z1 - WS_U}")
                O.vm(f"buffer_load_dwordx4 {vr(ZR(T_, b_),4)}, v{VS}, {SWS}, {sAB if b_ else sA} offen offset:{T_*512} sc1", ("z", T_, b_))
        bud = opt.get("p2fb", 6)
        while fi < len(fills) and fills[fi][0] <= j and bud >= fills[fi][1]:
            f = fills[fi]; bud -= f[1]; fi += 1
            if callable(f[2]): f[2]()
            else: O(f[2])
    O.slabel(".Lc2_mmend")
    while fi < len(fills):
        f = fills[fi]; fi += 1
        if callable(f[2]): f[2]()
        else: O(f[2])
    its = [O.o[marks[k]:marks[k+1]] for k in range(3)]
    norm = lambda L: [re.sub(r"\.L(sp|rt)_\d+", r".L\1", x) for x in L]
    assert norm(its[1]) == norm(its[2])
    if norm(its[0]) != norm(its[1]):
        for a, b in zip(norm(its[0]), norm(its[1])):
            if a != b: print("IT0 diff:", a, "|", b)
        assert all((a == b or a.startswith("s_waitcnt")) for a, b in zip(norm(its[0]), norm(its[1]))) and len(its[0]) == len(its[1])
    tail = [f"s_sub_u32 {sIT}, {sIT}, 1", f"s_cmp_lg_u32 {sIT}, 0", f"s_cbranch_scc1 .Lc2_loop_{sd}"]
    body = its[1]
    f1, n1 = hazfix.fix(body + tail); f2, n2 = hazfix.fix(body + tail + body + tail)
    assert n2 == 2*n1, (n1, n2)
    dead = set()
    for k in (0, 2):
        for x in its[k]:
            m = re.match(r"s_cbranch_vccnz (\.Lsp_\d+)", x)
            if m: dead.add(m.group(1))
    ool = []; skip = False
    for x in ctx.ool:
        x = x.strip()
        if x.endswith(":"): skip = x[:-1] in dead
        if not skip: ool.append(x)
    ctx.ool = ool
    O.o[marks[0]:marks[3]] = [f".Lc2_loop_{sd}:"] + body + tail + [f".Lc2_last_{sd}:"]
    O(f"""
    s_waitcnt vmcnt(0)
    s_mov_b64 exec, 1
    buffer_store_dword v{CTAG}, off, {SWS}, {sGF} sc1
    s_mov_b64 exec, -1
    """)
    O.lwaitall()
    if not Y:
        O(".Lc2_join:")
        ctx.ool += f""".Lc2_skip:
        ds_read_b32 v{CC}, v{CPOLL} offset:{G_SEQ}
        s_cmp_eq_u32 {sBUD}, 0
        s_waitcnt lgkmcnt(0)
        s_cbranch_scc1 .Lc2_skip2
        s_sub_u32 {sBUD}, {sBUD}, 1
        v_cmp_gt_u32 vcc, {N0}, v{CC}
        s_sleep 2
        s_cbranch_vccnz .Lc2_skip
        .Lc2_skip2:
        v_mov_b32 v{VFR}, 48
        ds_write_b32 v{CPUB}, v{VFR}
        s_waitcnt vmcnt(0) lgkmcnt(0)
        s_branch .Lc2_join""".split("\n")
    O.lq = []; O.nvm = 0; O.vtag = {}
    O.slabel(".Lc_p2end")


def M16(acc, a, b): return f"v_mfma_f32_16x16x32_bf16 {vr(acc,4)}, {vr(a,4)}, {vr(b,4)}, {vr(acc,4)}"

def p2_compute16(ctx, sd, O, h):
    opt = ctx.opt
    Y = sd == "y"
    N0 = h.thr["N0"]
    SC = "" if opt.get("nosc", 0) & 1 else " sc1"
    BX, VA, VS, VF, VFR = 4, 20, 24, 25, 30
    ZFL = opt.get("zfl")
    VB = VBE if ZFL else BF
    O(ids(sd, sTB, sFB, sKA, opt))
    if opt.get("norot") and not opt.get("brot"): O(f"s_mov_b32 {sKA}, 0")
    if not ZFL: O(f"""
    s_lshl_b32 {sFL}, {sFB}, 1
    s_lshr_b32 s3, {sW}, 1
    s_add_u32 {sFL}, {sFL}, s3
    s_lshl_b32 {sFL}, {sFL}, 8
    s_add_u32 {sFL}, {sFL}, {WS_F}
    """)
    O(f"v_lshlrev_b32 v{VF}, 2, v0")
    if not Y:
        O(f"""
        s_cmp_eq_u32 {sJ}, 7
        s_cbranch_scc1 .Lc2_skip
        """)
    if not ZFL: O.vm(f"buffer_load_dword v31, v{VF}, {SWS}, {sFL} offen sc1", "fl")
    O(f"""
    v_and_b32 v1, 15, v0
    v_lshrrev_b32 v2, 4, v0
    """)
    if not Y and not ZFL:
        O(f"""
        v_lshlrev_b32 v3, 1, v1
        s_lshl_b32 s3, {sTB}, 8
        """)
        for nt in range(8): O.vm(f"buffer_load_ushort v{VB+nt}, v3, {SBSP}, s3 offen offset:{nt*32}", "bias")
    O(f"""
    v_lshlrev_b32 v{VS}, 15, v2
    v_lshl_add_u32 v{VS}, v1, 4, v{VS}
    v_mul_u32_u24 v{VA}, {XP}, v2
    v_lshl_add_u32 v{VA}, v1, 4, v{VA}
    v_add_u32 v{VA+1}, {4*XP}, v{VA}
    v_lshrrev_b32 v3, 1, v1
    v_xor_b32 v3, v3, v2
    v_lshlrev_b32 v3, 4, v3
    v_lshl_add_u32 v{BX}, v1, 7, v3
    v_xor_b32 v{BX+1}, 64, v{BX}
    v_add_u32 v{BX+2}, 65536, v{BX}
    v_add_u32 v{BX+3}, 65536, v{BX+1}
    s_lshl2_add_u32 s3, {sFB}, {sW}             ; 4fb+w
    s_lshl_b32 {sAB}, s3, 9                     ; f0*16
    s_mul_i32 {sKA}, {sKA}, {8*XP}
    s_lshl_b32 {sO0}, s3, 17
    s_lshl_b32 {sGF}, s3, 2
    s_lshl_b32 s3, {sTB}, 11
    s_add_u32 {sO0}, {sO0}, s3
    s_add_u32 {sO0}, {sO0}, {WS_Y1}
    s_add_u32 {sO1}, {sO0}, {WS_Z1 - WS_U}
    s_lshl_b32 s3, {sTB}, 8
    s_add_u32 {sGF}, {sGF}, s3
    s_add_u32 {sGF}, {sGF}, {WS_G + (128 if Y else -128)}
    s_mov_b32 {sT}, {N0 - 28}
    s_mov_b32 {sIT}, 3
    v_mov_b32 v{VFR}, 16
    """)
    if Y:
        for r in range(64): O(f"v_mov_b32 v{ACC+r}, 0")
    else:
        O.vwait("bias")
        for r in range(64): O(f"v_lshlrev_b32 v{ACC+r}, 16, v{VB+r//8}")
    if not ZFL: O.z1flag()
    O.vwait("fl")
    O(f"""
    v_cmp_ne_u32 vcc, {sNONCE}, v{VBE+8 if ZFL else 31}
    s_cbranch_vccnz .Lc2_fl_@S
    .Lc2_go_@S:
    """)
    ctx.ool += f""".Lc2_fl_{sd}:
        s_sleep {opt.get("slp2", 0)}
        buffer_load_dword v31, v{VF}, {SWS}, {sFL} offen sc1
        s_cmp_eq_u32 {sBUD}, 0
        s_waitcnt vmcnt(0)
        s_cbranch_scc1 .Lc2_go_{sd}
        s_sub_u32 {sBUD}, {sBUD}, 16
        s_max_i32 {sBUD}, {sBUD}, 0
        v_cmp_ne_u32 vcc, {sNONCE}, v31
        s_cbranch_vccnz .Lc2_fl_{sd}
        s_branch .Lc2_go_{sd}""".split("\n")
    O.slabel(".Lc_p2go")
    def nextk(n):
        O(f"s_add_u32 {sA}, {sA}, {0 if opt.get('p2ak') and n >= 8 else 8*XP}")
        BL = opt.get("brot")
        if n % 4 == 0 or opt.get('sprd', 0) % 4 or BL == 8 or (BL == 16 and n % 2 == 0):
            O(f"s_cmp_eq_u32 {sA}, {sKA}")
            O(f"s_cselect_b32 {sA}, {sAB}, {sA}")
        if BL == 8 and n % 8 == 0:
            for r_ in (sA, sKA, sAB): O(f"s_add_u32 {r_}, {r_}, {64*XP}")
        if BL == 16 and n % 8 == 0:
            O(f"s_cmp_eq_u32 {sIT}, 2")
            O(f"s_cselect_b32 s3, {128*XP}, 0")
            for r_ in (sA, sKA, sAB): O(f"s_add_u32 {r_}, {r_}, s3")
    def AR(n, kk, mt): return AF + ((n & 7)*4 + kk*2 + mt)*4
    def lda(n, kk, mt):
        O.vm(f"buffer_load_dwordx4 {vr(AR(n,kk,mt),4)}, v{VA+kk}, {SWS}, {sA} offen{' offset:256' if mt else ''}{SC}" if not (opt.get("p2na") and 2*n + kk >= 15) else "s_nop 0", ("a", n, kk, mt))
    NM_ = opt.get("p2merge", 2)
    LAA = opt.get("laa", 8)
    items = []
    for n in range(32 - NM_):
        for kk in range(2):
            for nt in range(8): items.append((n, kk, nt))
    for nt in range(8):
        for n in range(32 - NM_, 32):
            for kk in range(2): items.append((n, kk, nt))
    NI = len(items)
    first = {}; last = {}; lastA = {}; firstA = {}; lastT = {}
    for j, (n, kk, nt) in enumerate(items):
        first.setdefault(n, j); last[n] = j; lastA[(n, kk)] = j; firstA.setdefault((n, kk), j); lastT[nt] = j
    def rdb(j):
        n, kk, nt = items[j]
        s = slot_of(n)
        reg = BX + (0 if s < 4 else 2) + kk
        O.lds(f"ds_read_b128 {vr(BF+(j&7)*4,4)}, v{reg} offset:{(s&3)*16384 + nt*2048}", ("b", j))
    def prerd(n): O.lds(f"ds_read_b32 v{CC}, v{CPOLL} offset:{G_SEQ}", ("pc", n))
    def chk(n): ctx.check(O, CC, CPOLL, G_SEQ, sT, ("pc", n))
    PDIST = opt.get("p2pd", 5)
    ex = {}
    pw = {}
    def EX(j, fn): ex.setdefault(j, []).append(fn)
    def zld(nt_): O.vm(f"buffer_load_dwordx4 {vr(ZR(nt_),4)}, v{VS}, {SWS}, {sO1} offen offset:{nt_*256}{SC}", ("z", nt_))
    def zfl():
        O(f"""
        s_lshl_b32 s3, {sTB}, 4
        s_add_u32 {sFL}, {sFL}, s3
        v_and_b32 v{VF}, 12, v{VF}
        """)
        O.vm(f"buffer_load_dword v31, v{VF}, {SWS}, {sFL} offen offset:{14*256} sc1", "zf")
    def zchk():
        O.vwait("zf")
        O(f"""
        v_cmp_ne_u32 vcc, {sNONCE}, v31
        s_cbranch_vccnz .Lc2_zf
        .Lc2_zgo:
        .Lc2_zg_g:
        """)
        ctx.ool += f""".Lc2_zf:
        buffer_load_dword v31, v{VF}, {SWS}, {sFL} offen offset:{14*256} sc1
        s_cmp_eq_u32 {sBUD}, 0
        s_waitcnt vmcnt(0)
        s_cbranch_scc1 .Lc2_zgo
        s_sub_u32 {sBUD}, {sBUD}, 16
        s_max_i32 {sBUD}, {sBUD}, 0
        v_cmp_ne_u32 vcc, {sNONCE}, v31
        s_cbranch_vccnz .Lc2_zf
        s_branch .Lc2_zgo""".split("\n")
    if not Y: EX(first[24] + 6, zfl)
    if opt.get("zdef"):
        assert LAA <= 4 and ZFL
        for n in (5, 13, 21): EX(first[n] + 6, O.z1f)
    for n in range(32):
        if 0 < n <= 32 - NM_:
            cp = first[n] - LA
            EX(cp - PDIST, lambda n=n: prerd(n))
            pw[cp] = ("pc", n)
            EX(cp, lambda n=n: chk(n))
            EX(cp - 2, lambda n=n: O(f"s_add_u32 {sT}, {sT}, {4*NM_ if n == 32 - NM_ else 4}"))
        if not (32 - NM_ <= n < 31):
            lp = last[n] - LA
            EX(lp - 1, lambda n=n: O(f"v_add_u32 v{VFR}, {NM_ if n == 31 else 1}, v{VFR}"))
            EX(lp + 2, lambda: O.lds(f"ds_write_b32 v{CPUB}, v{VFR}", "pub"))
        for kk in range(2):
            for mt in range(2):
                p = lastA[(n, kk)] + 1 + mt + (2 if kk == 0 else 0)
                if n + LAA < 32: EX(p, lambda n=n, kk=kk, mt=mt: lda(n + LAA, kk, mt))
                if not Y and n in (26, 27):
                    if (n, kk, mt) == (26, 0, 0): EX(p, zchk)
                    EX(p + (2 if n + LAA < 32 else 0), lambda n=n, kk=kk, mt=mt: zld((n - 26)*4 + kk*2 + mt))
        if n + LAA < 32: EX(first[n] + 4, lambda n=n: nextk(n + LAA))
    fills = []
    def ZR(nt): return AF + nt*4
    for nt in range(8):
        g = lastT[nt] + 2
        a0 = ACC + 8*nt
        if Y:
            for k in range(4): fills.append((g, 1, f"v_cvt_pk_bf16_f32 v{a0+k}, v{a0+2*k}, v{a0+2*k+1}"))
        else:
            fills.append((g, 0, lambda nt=nt: O.vwait(("z", nt))))
            for k in range(4):
                t = 2 if k & 1 else 8
                z = ZR(nt) + k
                fills.append((g, 1, f"v_lshlrev_b32 v{t}, 16, v{z}"))
                fills.append((g, 1, f"v_and_b32 v{t+1}, 0xffff0000, v{z}"))
                fills.append((g, 1, f"v_mul_f32 v{a0+2*k}, v{a0+2*k}, v{t}"))
                fills.append((g, 1, f"v_mul_f32 v{a0+2*k+1}, v{a0+2*k+1}, v{t+1}"))
                fills.append((g, 1, f"v_cvt_pk_bf16_f32 v{a0+k}, v{a0+2*k}, v{a0+2*k+1}"))
        fills.append((g, 1, lambda a0=a0, nt=nt: O.vm(f"buffer_store_dwordx4 {vr(a0,4)}, v{VS}, {SWS}, {sO0} offen offset:{nt*256} sc1")))
    O(f"""
    s_add_u32 {sA}, {sAB}, {sKA}
    s_add_u32 {sKA}, {sAB}, {opt.get("brot", 32)*8*XP}
    """)
    prerd(0)
    for n in range(LAA):
        if n: nextk(n)
        for q in range(4):
            if not (n == LAA - 1 and q >= 2): lda(n, q >> 1, q & 1)
        if n == 1:
            chk(0)
            O.slabel(".Lc_p2full0")
            for j in range(LA): rdb(j)
    EX(0, lambda: lda(LAA - 1, 1, 0)); EX(1, lambda: lda(LAA - 1, 1, 1))
    if ZFL: O.z1flag()
    marks = []
    fi = [0]
    def dofills(j, bud):
        while fi[0] < len(fills) and fills[fi[0]][0] <= j and bud >= fills[fi[0]][1]:
            f = fills[fi[0]]; bud -= f[1]; fi[0] += 1
            if callable(f[2]): f[2]()
            else: O(f[2])
    FB = opt.get("p2fb", 2)
    WG = opt.get("p2wg", 2)
    AL = opt.get("p2al", 0)
    for j, (n, kk, nt) in enumerate(items):
        if j % 128 == 0: marks.append(len(O.o)); O("; it")
        if n >= 24 and first[n] == j: O.slabel(f".Lc2_n{n}")
        if firstA[(n, kk)] == j: O.vwait(("a", n, kk, 1))
        if j in pw: O.lwait(pw[j])
        if j % WG == 0: O.lwait(("b", min(j + WG - 1, NI - 1)))
        if AL: O(".p2align 3")
        O(M16(ACC + 8*nt, AR(n, kk, 0), BF + (j & 7)*4))
        for fn in ex.get(j, []): fn()
        dofills(j, FB)
        if AL: O(".p2align 3")
        O(M16(ACC + 8*nt + 4, AR(n, kk, 1), BF + (j & 7)*4))
        if j + LA < NI: rdb(j + LA)
        dofills(j, FB - 1)
    O.slabel(".Lc2_mmend")
    dofills(10**9, 10**9)
    roll(ctx, sd, O, marks)
    p2_tail(ctx, sd, O, N0, VFR)

def roll(ctx, sd, O, marks):
    its = [O.o[marks[k]:marks[k+1]] for k in range(3)]
    norm = lambda L: [re.sub(r"\.L(sp|rt)_\d+", r".L\1", x) for x in L]
    assert norm(its[1]) == norm(its[2])
    assert len(its[0]) == len(its[1])
    body = list(its[1])
    for k, (a, b) in enumerate(zip(norm(its[0]), norm(its[1]))):
        if a != b:
            assert a.startswith("s_waitcnt") and b.startswith("s_waitcnt"), (a, b)
            d = {}
            for p in a.split()[1:] + b.split()[1:]:
                nm, v = p[:-1].split("("); d[nm] = min(d.get(nm, 99), int(v))
            body[k] = "s_waitcnt " + " ".join(f"{x}({d[x]})" for x in sorted(d, reverse=True))
    tail = [f"s_sub_u32 {sIT}, {sIT}, 1", f"s_cmp_lg_u32 {sIT}, 0", f"s_cbranch_scc1 .Lc2_loop_{sd}"]
    mi = [k for k, x in enumerate(body) if x.startswith("v_mfma")]
    body[mi[-3]:mi[-3]] = tail[:2]; tail = tail[2:]
    assert not any(x.startswith(("s_add", "s_cmp", "s_sub", "s_and", "s_lshl")) for x in body[mi[-3]+2:])
    f1, n1 = hazfix.fix(body + tail); f2, n2 = hazfix.fix(body + tail + body + tail)
    assert n2 == 2*n1, (n1, n2)
    dead = set()
    for k in (0, 2):
        for x in its[k]:
            m = re.match(r"s_cbranch_vccnz (\.Lsp_\d+)", x)
            if m: dead.add(m.group(1))
    ool = []; skip = False
    for x in ctx.ool:
        x = x.strip()
        if x.endswith(":"): skip = x[:-1] in dead
        if not skip: ool.append(x)
    ctx.ool = ool
    O.o[marks[0]:marks[3]] = [f".Lc2_loop_{sd}:"] + body + tail + [f".Lc2_last_{sd}:"]

def p2_tail(ctx, sd, O, N0, VFR):
    O(f"""
    s_waitcnt vmcnt(0)
    s_mov_b64 exec, 1
    buffer_store_dword v{CTAG}, off, {SWS}, {sGF} sc1
    s_mov_b64 exec, -1
    """)
    O.lwaitall()
    if sd == "g":
        O(".Lc2_join:")
        ctx.ool += f""".Lc2_skip:
        ds_read_b32 v{CC}, v{CPOLL} offset:{G_SEQ}
        s_cmp_eq_u32 {sBUD}, 0
        s_waitcnt lgkmcnt(0)
        s_cbranch_scc1 .Lc2_skip2
        s_sub_u32 {sBUD}, {sBUD}, 1
        v_cmp_gt_u32 vcc, {N0}, v{CC}
        s_sleep 2
        s_cbranch_vccnz .Lc2_skip
        .Lc2_skip2:
        v_mov_b32 v{VFR}, 48
        ds_write_b32 v{CPUB}, v{VFR}
        .Lc2_skip3:
        buffer_load_dword v{CTAG}, off, {SDBG}, 0 sc1
        s_cmp_eq_u32 {sBUD}, 0
        s_waitcnt vmcnt(0) lgkmcnt(0)
        s_cbranch_scc1 .Lc2_join
        s_sub_u32 {sBUD}, {sBUD}, 1
        v_readfirstlane_b32 {sNONCE}, v{CTAG}
        s_cmp_lg_u32 {sNONCE}, 0
        s_cbranch_scc0 .Lc2_skip3
        s_branch .Lc2_join""".split("\n")
    O.lq = []; O.nvm = 0; O.vtag = {}
    O.slabel(".Lc_p2end")
```

```python
from gzlib import *
from gz1 import CPOLL, CPUB, CC, CT_, CTAG, SWP
from gz2 import WO_UNIT

AWA, AWB, VU, VX_, VF, VE, VPD = 4, 5, 6, 7, 25, 16, 17
BF, ACA, ACB, UF = 32, 64, 80, 128
XR, Y1R, Y2R, PR = 96, 104, 112, 240
sT0, sU, sXO, sY, sG, sKH = "s48", "s49", "s50", "s51", "s52", "s53"

def p3_compute(ctx, sd, O, h):
    opt = ctx.opt
    Y = sd == "y"
    SC = "" if opt.get("nosc", 0) & 2 else " sc1"
    if opt.get("dx"): O(f"s_xor_b32 {sJ}, {sJ}, {opt['dx']}")
    if opt.get("swp"):
        O(SWP(opt, sT0))
        O(f"""
        s_and_b32 {sT0}, {sT0}, 7
        s_lshl_b32 {sT0}, {sT0}, 2
        s_lshr_b32 {sT0}, 0x32761504, {sT0}
        s_and_b32 {sT0}, {sT0}, 7
        s_lshr_b32 s3, s2, 6
        s_lshl2_add_u32 {sT0}, {sT0}, s3
        """)
    elif opt.get("p3map"):
        O(f"""
        s_and_b32 {sT0}, s2, 3
        s_lshl_b32 {sT0}, {sT0}, 2
        s_lshr_b32 {sT0}, {0x1504 if Y else 0x3276}, {sT0}
        s_and_b32 {sT0}, {sT0}, 7
        s_lshr_b32 s3, s2, 6
        s_lshl2_add_u32 {sT0}, {sT0}, s3
        """)
    else:
        O(f"""
        s_and_b32 {sT0}, s2, 3
        s_lshl_b32 {sT0}, {sT0}, 3
        s_lshr_b32 s3, s2, 6
        s_add_u32 {sT0}, {sT0}, s3
        s_add_u32 {sT0}, {sT0}, {0 if Y else 4}     ; t64
        """)
    O(f"""
    s_lshr_b32 {sG}, {sT0}, 1
    s_lshl_b32 {sG}, {sG}, 8
    s_add_u32 {sG}, {sG}, {WS_G}
    v_lshlrev_b32 v{VF}, 2, v0
    """)
    O.vm(f"buffer_load_dword v31, v{VF}, {SWS}, {sG} offen sc1", "fl")
    O(f"""
    s_lshr_b32 {sKH}, {sW}, 1
    s_and_b32 s3, {sW}, 1
    s_lshl1_add_u32 {sT0}, {sT0}, s3            ; t0/32
    v_and_b32 v1, 31, v0
    v_lshrrev_b32 v2, 5, v0
    v_lshlrev_b32 v{VX_}, 4, v2
    v_lshl_add_u32 v{VX_}, v1, 10, v{VX_}
    s_lshl_b32 {sXO}, {sT0}, 15
    s_lshl1_add_u32 s3, {sJ}, {sKH}             ; 2*d64+kh
    s_lshl_b32 {sY}, s3, 17
    s_lshl_b32 s3, s3, 6
    s_add_u32 {sXO}, {sXO}, s3
    """)
    for b in range(2): O.vm(f"buffer_load_dwordx4 {vr(XR+4*b,4)}, v{VX_}, {SX}, {sXO} offen offset:{b*32}", "x")
    O(f"""
    v_lshlrev_b32 v{VU}, 15, v2
    v_lshl_add_u32 v{VU}, v1, 4, v{VU}
    s_lshl_b32 {sT0}, {sT0}, 9                  ; t0*16
    s_mul_i32 {sU}, {sKH}, {56*32768}
    s_add_u32 {sU}, {sU}, {sT0}
    s_add_u32 {sU}, {sU}, {WS_U}
    s_add_u32 {sY}, {sY}, {sT0}
    s_add_u32 {sY}, {sY}, {WS_Y1}
    v_bfe_u32 v3, v0, 2, 2
    v_lshl_add_u32 v3, v2, 3, v3
    v_lshlrev_b32 v3, 7, v3
    v_bfe_u32 v1, v0, 4, 1
    v_bfe_u32 v2, v0, 3, 1
    v_lshl_add_u32 v1, v2, 1, v1
    v_lshl_add_u32 v3, v1, 5, v3
    v_and_b32 v1, 1, v0
    v_lshl_add_u32 v3, v1, 4, v3
    v_bfe_u32 v1, v0, 1, 1
    v_lshl_add_u32 v3, v1, 3, v3
    s_mul_i32 s3, {sKH}, {8192+64}
    v_xor_b32 v{AWA}, s3, v3
    v_xor_b32 v{AWB}, 64, v{AWA}
    s_lshl_b32 s3, {sW}, 12
    s_add_u32 s3, s3, {EXCH}
    v_lshl_add_u32 v{VE}, v0, 4, s3
    s_xor_b32 s3, {sW}, 2
    s_lshl_b32 s3, s3, 8
    s_add_u32 s3, s3, {MISC+G_PD}
    v_mov_b32 v{VPD}, s3
    s_lshl_b32 s3, {sJ}, 1
    s_lshl_b32 s55, 0x30003, s3
    s_mov_b32 s54, 0x0FFFFFFF
    """)
    O.lds(f"ds_read_b32 v{CC}, v{CPOLL} offset:{G_SEQ}", "pw")
    SP = opt.get("p3sp")
    MSK = "s_and_b32 s3, vcc_lo, s54" if SP else "s_and_b64 vcc, vcc, s[54:55]"
    O.vwait("fl")
    O(f"""
    v_cmp_ne_u32 vcc, {sNONCE}, v31
    {MSK}
    s_cbranch_scc1 .Lc3_fl_@S
    .Lc3_go_@S:
    """)
    ctx.ool += f""".Lc3_fl_{sd}:
        s_sleep {opt.get("slp3", 0)}
        buffer_load_dword v31, v{VF}, {SWS}, {sG} offen sc1
        s_cmp_eq_u32 {sBUD}, 0
        s_waitcnt vmcnt(0)
        s_cbranch_scc1 .Lc3_go_{sd}
        s_sub_u32 {sBUD}, {sBUD}, 16
        s_max_i32 {sBUD}, {sBUD}, 0
        v_cmp_ne_u32 vcc, {sNONCE}, v31
        s_nop 1
        {MSK}
        s_cbranch_scc1 .Lc3_fl_{sd}
        s_branch .Lc3_go_{sd}""".split("\n")
    O.slabel(".Lc_p3go")
    YPOS = opt.get("p3y", 8)
    PI, PB, PC = opt.get("p3i", 10), opt.get("p3b", 14), opt.get("p3c", 22)
    def ldu(j):
        O.vm(f"buffer_load_dwordx4 {vr(UF+4*j,4)}, v{VU}, {SWS}, {sU} offen{SC}", ("u", j))
        if j < 27: O(f"s_add_u32 {sU}, {sU}, 65536")
    def ldy():
        O(f"s_add_u32 s3, {sY}, 65536")
        O.vm(f"buffer_load_dwordx4 {vr(Y1R,4)}, v{VU}, {SWS}, {sY} offen{SC}")
        O.vm(f"buffer_load_dwordx4 {vr(Y1R+4,4)}, v{VU}, {SWS}, s3 offen{SC}")
        O(f"s_add_u32 {sY}, {sY}, {WS_Y2-WS_Y1}")
        O(f"s_add_u32 s3, s3, {WS_Y2-WS_Y1}")
        O.vm(f"buffer_load_dwordx4 {vr(Y2R,4)}, v{VU}, {SWS}, {sY} offen{SC}")
        O.vm(f"buffer_load_dwordx4 {vr(Y2R+4,4)}, v{VU}, {SWS}, s3 offen{SC}", "y")
    def chk2():
        O.vwait("fl2")
        O(f"""
        v_cmp_ne_u32 vcc, {sNONCE}, v30
        s_and_b32 s3, vcc_hi, s55
        s_cbranch_scc1 .Lc3_f2_@S
        .Lc3_g2_@S:
        """)
        ctx.ool += f""".Lc3_f2_{sd}:
        buffer_load_dword v30, v{VF}, {SWS}, {sG} offen sc1
        s_cmp_eq_u32 {sBUD}, 0
        s_waitcnt vmcnt(0)
        s_cbranch_scc1 .Lc3_g2_{sd}
        s_sub_u32 {sBUD}, {sBUD}, 16
        s_max_i32 {sBUD}, {sBUD}, 0
        v_cmp_ne_u32 vcc, {sNONCE}, v30
        s_nop 1
        s_and_b32 s3, vcc_hi, s55
        s_cbranch_scc0 .Lc3_g2_{sd}
        s_sleep {opt.get("slp4", 4)}
        s_branch .Lc3_f2_{sd}""".split("\n")
        ldy()
        for j in range(PC, 28): ldu(j)
    def poll2():
        O.vm(f"buffer_load_dword v30, v{VF}, {SWS}, {sG} offen sc1", "fl2")
        for j in range(PB, PC): ldu(j)
    for j in range(PB if SP else 28):
        ldu(j)
        if j == YPOS and not SP: ldy()
    if SP: YPOS = PC - 2
    ctx.check(O, CC, CPOLL, G_SEQ, h.thr["wo"], "pw")
    O.lds(f"ds_read_b32 v{CC}, v{CPOLL} offset:{G_PC}", "pc")
    NL = opt.get("p3nl", 4)
    items = []
    for j in range(28 - NL): items += [(j, 1), (j, 0)]
    items += [(j, 1) for j in range(28 - NL, 28)] + [(j, 0) for j in range(28 - NL, 28)]
    aw = [AddrReg(AWA), AddrReg(AWB)]
    def rd(i):
        j, t = items[i]
        p = WO_UNIT[j >> 2]*8192 + (j & 3)*2048
        o = aw[t].off(O, p, 512)
        f = BF + (i & 7)*4
        O.lds(f"ds_read_b64_tr_b16 {vr(f,2)}, v{AWA+t} offset:{o}", ("w", i))
        O.lds(f"ds_read_b64_tr_b16 {vr(f+2,2)}, v{AWA+t} offset:{o+512}", ("w", i))
    LA = 7
    fills = [(2*YPOS+4, 0, lambda: O.vwait("y"))]
    for k in range(8):
        p = PR + 2*k; t = 2 if k & 1 else 8
        g = 2*YPOS + 4
        for s_ in (f"v_lshlrev_b32 v{p}, 16, v{Y1R+k}", f"v_and_b32 v{p+1}, 0xffff0000, v{Y1R+k}",
                   f"v_lshlrev_b32 v{t}, 16, v{Y2R+k}", f"v_and_b32 v{t+1}, 0xffff0000, v{Y2R+k}",
                   f"v_sub_f32 v{p}, v{p}, v{t}", f"v_sub_f32 v{p+1}, v{p+1}, v{t+1}",
                   f"v_cvt_pk_bf16_f32 v{p+1}, v{p}, v{p+1}",
                   f"v_lshlrev_b32 v{t}, 16, v{XR+k}", f"v_and_b32 v{t+1}, 0xffff0000, v{XR+k}",
                   f"v_lshlrev_b32 v{p}, 16, v{p+1}", f"v_and_b32 v{p+1}, 0xffff0000, v{p+1}",
                   f"v_add_f32 v{p}, v{p}, v{t}", f"v_add_f32 v{p+1}, v{p+1}, v{t+1}",
                   f"v_cvt_pk_bf16_f32 v{p+1}, v{p}, v{p+1}",
                   f"v_lshlrev_b32 v{p}, 16, v{p+1}", f"v_and_b32 v{p+1}, 0xffff0000, v{p+1}"):
            fills.append((g, 1, s_))
    lastB = max(i for i, (j, t) in enumerate(items) if t == 1)
    g = lastB + 2
    fills.append((g, 0, lambda: ctx.check(O, CC, CPOLL, G_PC, 48, "pc")))
    for q in range(4):
        fills.append((g, 3, lambda q=q: O.lds(f"ds_write_b128 v{VE}, {vr(ACB+4*q,4)} offset:{q*1024}", "ex")))
    fills.append((g, 1, f"v_mov_b32 v{CT_}, 4"))
    fills.append((g, 1, lambda: O.lds(f"ds_write_b32 v{CPUB}, v{CT_} offset:{G_PD-G_PC}", "pub")))
    fills.append((g, 1, f"v_xor_b32 v{VE}, 8192, v{VE}"))
    for i in range(LA): rd(i)
    seen = set(); fi = 0
    def dofill(f):
        if callable(f[2]): f[2]()
        else: O(f[2])
    for i, (j, t) in enumerate(items):
        if j not in seen: O.vwait(("u", j)); seen.add(j)
        O.lwait(("w", i))
        O(MF(ACB if t else ACA, BF + (i & 7)*4, UF + 4*j, j == 0))
        if i + LA < len(items): rd(i + LA)
        if SP and i == PI: poll2()
        if SP and i == 2*PB - 1: chk2()
        bud = opt.get("p3fb", 6)
        while fi < len(fills) and fills[fi][0] <= i and bud >= fills[fi][1]:
            bud -= fills[fi][1]; dofill(fills[fi]); fi += 1
    while fi < len(fills): dofill(fills[fi]); fi += 1
    O.slabel(".Lc_p3mm")
    O.lds(f"ds_read_b32 v{CC}, v{VPD}", "pd")
    ctx.check(O, CC, VPD, 0, 4, "pd")
    for q in range(4): O.lds(f"ds_read_b128 {vr(ACB+4*q,4)}, v{VE} offset:{q*1024}", ("er", q))
    for b in range(2):
        for k in range(4):
            kk = 4*b + k; a = ACA + 2*kk; p = PR + 2*kk
            if k % 2 == 0: O.lwait(("er", kk >> 1))
            O(f"""
            v_pk_add_f32 {vr(a,2)}, {vr(a,2)}, {vr(ACB+2*kk,2)}
            v_cvt_pk_bf16_f32 v{a+1}, v{a}, v{a+1}
            v_lshlrev_b32 v{a}, 16, v{a+1}
            v_and_b32 v{a+1}, 0xffff0000, v{a+1}
            v_pk_add_f32 {vr(a,2)}, {vr(a,2)}, {vr(p,2)}
            v_cvt_pk_bf16_f32 v{XR+kk}, v{a}, v{a+1}
            """)
        O.vm(f"buffer_store_dwordx4 {vr(XR+4*b,4)}, v{VX_}, {SOUT}, {sXO} offen offset:{b*32}")
    O.slabel(".Lc_p3end")
```

```python
import sys
from gzlib import *
from asmlib import descriptor
import gz1

NAME = "gz_kernel"
HEADER = open("parallel_sum__spectral_fnet__mixer_gmlp__prompt.s.ref").read().split("; Override")[0]

def SRD(sd, role, opt={}):
    t = f"""
    s_waitcnt lgkmcnt(0)
    s_mov_b32 s4, s44
    s_mov_b32 s5, s45
    s_mov_b32 s8, s56
    s_mov_b32 s9, s57
    s_mov_b32 s12, {'s50' if sd == 'y' else 's52'}
    s_mov_b32 s13, {'s51' if sd == 'y' else 's53'}
    s_mov_b32 s16, s68
    s_mov_b32 s17, s69
    s_mov_b32 s20, s66
    s_mov_b32 s21, s67
    """
    if opt.get("absw"):
        t += gz1.ABSEL(sd) + """
        s_cselect_b32 s12, s50, s52
        s_cselect_b32 s13, s51, s53
        """
    if opt.get("uni"):
        assert opt.get("absw")
        t = "\n".join(x for x in t.split("\n") if not x.strip().startswith(("s_mov_b32 s12,", "s_mov_b32 s13,")))
        t += f"""
        s_bitcmp0_b32 s2, 1
        s_cselect_b32 s40, s46, s48
        s_cselect_b32 s41, s47, s49
        s_mov_b32 s42, {2048*4096}
        s_bitcmp0_b32 s2, 2
        s_cselect_b32 s24, s40, s58
        s_cselect_b32 s25, s41, s59
        """
        if role == "h": t += f"""
        s_cselect_b32 s40, s52, s40
        s_cselect_b32 s41, s53, s41
        s_cselect_b32 s42, {512*1024}, s42
        """
    elif sd == "y":
        t += """
        s_bitcmp0_b32 s2, 1
        s_cselect_b32 s24, s46, s48
        s_cselect_b32 s25, s47, s49
        """
        if role == "h": t += f"""
        s_mov_b32 s40, s52
        s_mov_b32 s41, s53
        s_mov_b32 s42, {512*1024}
        """
    else:
        t += """
        s_mov_b32 s24, s58
        s_mov_b32 s25, s59
        """
        if role == "h": t += f"""
        s_bitcmp0_b32 s2, 1
        s_cselect_b32 s40, s46, s48
        s_cselect_b32 s41, s47, s49
        s_mov_b32 s42, {2048*4096}
        """
    t += f"""
    s_mov_b32 s28, s62
    s_mov_b32 s29, s63
    s_mov_b32 s32, s64
    s_mov_b32 s33, s65
    s_mov_b32 s36, s60
    s_mov_b32 s37, s61
    """
    return [x.strip() for x in t.split("\n") if x.strip()]

def gen(opt):
    stop = opt.get("stop", 3)
    UN = opt.get("uni"); gz1.UNI[0] = UN
    parts = {}
    L = [f".globl {NAME}", ".p2align 8", f".type {NAME},@function", f"{NAME}:"]
    pro = f"""
    s_cmp_ge_u32 s2, 256
    s_cbranch_scc1 .Lexit
    s_load_dwordx16 s[44:59], s[0:1], 0
    s_load_dwordx8 s[60:67], s[0:1], 64
    s_load_dwordx2 s[68:69], s[0:1], 96
    v_lshrrev_b32 v1, 6, v0
    {gz1.SWP(opt, "s2")}
    s_and_b32 {sRB}, s2, 3
    s_lshl_b32 {sRB}, {sRB}, 2
    v_readfirstlane_b32 {sWAVE}, v1
    v_and_b32 v0, 63, v0
    s_lshr_b32 s3, s2, 6
    s_add_u32 {sRB}, {sRB}, s3
    s_bfe_u32 {sJ}, s2, {3 | (3 << 16)}
    s_and_b32 {sW}, {sWAVE}, 3
    s_mov_b32 {sBUD}, {1<<18}
    s_mov_b32 s6, {2048*1024}
    s_mov_b32 s7, 0x20000
    s_mov_b32 s10, {512*3584}
    s_mov_b32 s11, 0x20000
    s_mov_b32 s14, {512*1024}
    s_mov_b32 s15, 0x20000
    s_mov_b32 s18, {WS_USED}
    s_mov_b32 s19, 0x20000
    s_mov_b32 s22, 256
    s_mov_b32 s23, 0x20000
    s_mov_b32 s26, {2048*4096}
    s_mov_b32 s27, 0x20000
    s_mov_b32 s30, {896*1024}
    s_mov_b32 s31, 0x20000
    s_mov_b32 s34, {2048*1024}
    s_mov_b32 s35, 0x20000
    s_mov_b32 s38, 4096
    s_mov_b32 s39, 0x20000
    s_mov_b32 s43, 0x20000
    {"s_bitcmp1_b32 s2, 2" if not UN else ""}
    {"s_cbranch_scc1 .Lside_g" if not UN else ""}
    """
    L += [x.strip() for x in pro.split("\n") if x.strip()]
    nctx = 0
    for sd in ("y", "g"):
        ctx = Ctx(opt); ctx.n = nctx
        hooks = {}
        def c_first(O, sd=sd):
            if opt.get("pretouch", 0) == 2:
                O(f"""
                s_lshr_b32 s77, s2, 3           ; i
                s_cmp_lt_u32 {sW}, 2
                s_cbranch_scc0 .Lpt_z_{sd}
                s_and_b32 s3, s2, 3
                s_lshl_b32 s3, s3, 5
                s_add_u32 s3, s3, s77
                s_lshl_b32 s3, s3, 1
                s_add_u32 s3, s3, {sW}
                s_lshl_b32 s3, s3, 13
                buffer_load_dword v31, v1, {SX}, s3 offen
                s_branch .Lpt_e_{sd}
                .Lpt_z_{sd}:
                v_lshrrev_b32 v2, 3, v0
                v_mul_u32_u24 v2, 3584, v2
                v_and_b32 v3, 7, v0
                v_min_u32 v3, 6, v3
                v_lshl_add_u32 v2, v3, 7, v2
                s_lshl_b32 s3, s77, 1
                s_add_u32 s3, s3, {sW}
                s_mul_i32 s3, s3, {8*3584}
                s_add_u32 s3, s3, {(1792 + (0 if sd == "y" else 896) - 16*3584) & 0xffffffff}
                buffer_load_dword v31, v2, {SWIN}, s3 offen
                .Lpt_e_{sd}:
                """)
            if opt.get("pretouch", 0) == 1:
                O(f"""
                s_bitcmp0_b32 s2, 0
                s_cselect_b32 s40, s50, s52
                s_cselect_b32 s41, s51, s53
                s_lshr_b32 s3, s2, 1
                s_mov_b32 s42, 4096
                s_cmp_eq_u32 {sW}, 0
                s_cselect_b32 s40, s44, s40
                s_cselect_b32 s41, s45, s41
                s_cselect_b32 s42, 8192, s42
                s_cmp_eq_u32 {sW}, 1
                s_cselect_b32 s40, s56, s40
                s_cselect_b32 s41, s57, s41
                s_cselect_b32 s42, 7168, s42
                s_cmp_eq_u32 {sW}, 3
                s_cselect_b32 s40, s62, s40
                s_cselect_b32 s41, s63, s41
                s_cselect_b32 s42, 3584, s42
                s_cmp_eq_u32 {sW}, 2
                s_cselect_b32 s3, s3, s2
                s_mul_i32 s3, s3, s42
                s_add_u32 s40, s40, s3
                s_addc_u32 s41, s41, 0
                """)
                O.vm(f"buffer_load_dword v31, v1, {STCH}, 0 offen")
            if UN:
                O(f"""
                s_getpc_b64 s[78:79]
                .Lpc_{sd}:
                s_sub_u32 s78, s78, .Lpc_y-.Lside_y
                s_subb_u32 s79, s79, 0
                s_lshr_b32 s3, s2, 6
                s_bitcmp1_b32 s2, 2
                s_cselect_b32 s77, 7, 8
                s_cselect_b32 s76, .Lshe-.Lside_y, -1
                s_mul_i32 s3, s3, s77
                s_add_u32 s3, s3, {sJ}
                s_lshl2_add_u32 s3, s3, {sW}
                s_mul_i32 s3, s3, 384
                s_cmp_ge_u32 s3, s76
                s_cselect_b32 s76, .Lside_g-.Lshe-384, 0
                s_add_u32 s3, s3, s76
                v_and_b32 v2, 3, v0
                v_min_u32 v2, 2, v2
                v_lshl_add_u32 v2, v2, 7, s3
                v_min_u32 v2, .Lend_g-.Lside_y-4, v2
                """)
                O.vm(f"global_load_dword v5, v2, s[78:79]")
            elif opt.get("ctouch", 1) == 2:
                O(f"""
                s_getpc_b64 s[78:79]
                .Lpc_{sd}:
                s_sub_u32 s78, s78, .Lpc_{sd}-.Lside_{sd}
                s_subb_u32 s79, s79, 0
                s_lshr_b32 s3, s2, 6
                s_mul_i32 s3, s3, {8 if sd == "y" else 7}
                s_add_u32 s3, s3, {sJ}
                s_lshl2_add_u32 s3, s3, {sW}
                s_mul_i32 s3, s3, 384
                v_and_b32 v2, 3, v0
                v_min_u32 v2, 2, v2
                v_lshl_add_u32 v2, v2, 7, s3
                v_min_u32 v2, .Lend_{sd}-.Lside_{sd}-4, v2
                """)
                O.vm(f"global_load_dword v5, v2, s[78:79]")
            if opt.get("ctouch", 1) == 1:
                O(f"""
                s_getpc_b64 s[78:79]
                .Lpc_{sd}:
                s_sub_u32 s78, s78, .Lpc_{sd}-.Lside_{sd}
                s_subb_u32 s79, s79, 0
                s_bfe_u32 s3, s2, {3 | (1 << 16)}
                s_lshl_b32 s3, s3, 2
                s_add_u32 s3, s3, {sW}
                s_lshl_b32 s3, s3, 13
                v_add_u32 v2, s3, v1
                v_min_u32 v2, .Lend_{sd}-.Lside_{sd}-4, v2
                """)
                O.vm(f"global_load_dword v5, v2, s[78:79]")
            if sd == "y" or UN:
                O(f"""
                s_or_b32 s3, s2, {sW}
                s_cmp_lg_u32 s3, 0
                s_cbranch_scc1 .Lc_nononce
                s_memrealtime s[60:61]
                s_waitcnt lgkmcnt(0)
                s_or_b32 s60, s60, 1
                v_mov_b32 v1, s60
                buffer_store_dword v1, off, {SDBG}, 0 sc1
                .Lc_nononce:
                """)
        hooks["c_first"] = c_first
        def t_u(h, sd=sd):
            e = h.e
            if sd == "y":
                e(f"""
                s_lshr_b32 s3, s2, 3
                s_lshl_b32 s3, s3, 1
                s_and_b32 s79, {sW}, 1
                s_add_u32 s3, s3, s79
                s_lshl_b32 s3, s3, 13
                v_lshlrev_b32 v126, 7, v0
                """)
                e.vm(f"buffer_load_dword v127, v126, {STCH}, s3 offen")
            else:
                e(f"""
                v_lshrrev_b32 v126, 4, v0
                v_mul_u32_u24 v126, 3584, v126
                v_and_b32 v127, 15, v0
                v_min_u32 v127, 13, v127
                v_lshl_add_u32 v126, v127, 7, v126
                s_lshr_b32 s3, s2, 3
                s_lshl_b32 s3, s3, 2
                s_add_u32 s3, s3, {sW}
                s_mul_i32 s3, s3, {4*3584}
                """)
                e.vm(f"buffer_load_dword v127, v126, {SWIN}, s3 offen")
        if opt.get("pretouch", 0) == 2:
            hooks[["h_first", "h_s1", "h_s3", "h_issued", "h_s6", "h_s7"][opt.get("tu", 3)]] = t_u
        if stop >= 2:
            import gz2
            gz2.install_hooks(ctx, sd, hooks)
        h = gz1.p1_helper(ctx, sd, hooks)
        c = gz1.p1_compute(ctx, sd, h.thr, hooks, getattr(h, 'thr7', None))
        if stop >= 2:
            gz2.p2_helper(ctx, sd, h); (gz2.p2_compute16 if opt.get("p2s", 16) == 16 else gz2.p2_compute)(ctx, sd, c, h)
        if stop >= 3:
            import gz3
            gz3.p3_compute(ctx, sd, c, h)
        def expand(st):
            o = []
            for x in st.o:
                if x == "@SRD": o += SRD(sd, st.name, opt)
                else: o.append(x)
            st.o = o
            return st.fixed()
        if UN:
            H_, C_ = expand(h.e), expand(c)
            i, j = H_.index("@SPLIT"), C_.index("@SPLIT")
            parts[sd] = (H_[:i], H_[i+1:], C_[:j], C_[j+1:], [x.strip() for x in ctx.ool])
            nctx = ctx.n
            continue
        L += [f".Lside_{sd}:", f"s_cmp_lt_u32 {sWAVE}, 4", f"s_cbranch_scc1 .Lcompute_{sd}"]
        L += expand(h.e) + ["s_endpgm", f".Lcompute_{sd}:"] + expand(c)
        if sd == "y": L += [".Lexit:"]
        L += ["s_endpgm"]
        L += [x.strip() for x in ctx.ool] + [f".Lend_{sd}:"]
        nctx = ctx.n
    if UN:
        import re
        norm = lambda A: [re.sub(r"_(y|g)\b", "_S", re.sub(r"\.L(sp|rt|no|nk)_\d+", r".L\1", x.strip())) for x in A]
        Y_, G_ = parts["y"], parts["g"]
        assert norm(Y_[0]) == norm(G_[0]) and norm(Y_[2]) == norm(G_[2])
        live = set(re.findall(r"\.L(?:sp|no)_\d+", "\n".join(G_[1] + G_[3])))
        ool = []; skip = False
        for x in G_[4]:
            if x.endswith(":"): skip = re.fullmatch(r"\.L(?:sp|no)_\d+:", x) is not None and x[:-1] not in live
            if not skip: ool.append(x)
        shl = set(re.findall(r"\.L(?:sp|no)_\d+|\.Lh_j7|\.Lc_ct2", "\n".join(Y_[0] + Y_[2])))
        so = []; yo = []; cur = yo
        for x in Y_[4]:
            if x.endswith(":"): cur = so if x[:-1] in shl else yo
            if x == ".Lh_v7:": so.append("s_branch .Lh_v7")
            cur.append(x)
        L += [".Lside_y:", f"s_cmp_lt_u32 {sWAVE}, 4", "s_cbranch_scc1 .Lcompute_y"]
        L += Y_[0] + ["s_bitcmp1_b32 s2, 2", "s_cbranch_scc1 .Lh_tail_g", "s_branch .Lh_tail_y"] + so
        L += [".Lcompute_y:"] + Y_[2] + ["s_bitcmp1_b32 s2, 2", "s_cbranch_scc1 .Lc_tail_g", ".Lshe:"] + Y_[3] + [".Lexit:", "s_endpgm"]
        L += [".Lh_tail_y:"] + Y_[1] + ["s_endpgm"] + yo + [".Lend_y:"]
        L += [".Lside_g:", ".Lh_tail_g:"] + G_[1] + ["s_endpgm", ".Lc_tail_g:"] + G_[3] + ["s_endpgm"] + ool + [".Lend_g:"]
    body = "\n".join((x.strip() if x.strip().endswith(":") or x.startswith(".") else "  " + x.strip()) for x in L) + "\n"
    txt = HEADER + f"; @launch kernel={NAME} grid=(256,1,1) block=(512,1,1) lds=163840\n"
    if opt.get("p2s", 16) == 16: body = "; XTPERM\n" + body
    txt += '.amdgcn_target "amdgcn-amd-amdhsa--gfx950"\n.text\n' + body + '.section .rodata,"a"\n' + descriptor(NAME)
    return txt

if __name__ == "__main__":
    opt = {}
    for kv in sys.argv[2:]:
        k, v = kv.split("="); opt[k] = int(v)
    open(sys.argv[1], "w").write(gen(opt))
```
